```python
import torch

def _softmax(x, axis=-1):
    return torch.softmax(x, dim=axis)
def _gelu(x):
    return torch.nn.functional.gelu(x, approximate="tanh")
def _silu(x):
    return torch.nn.functional.silu(x)
def _sigmoid(x):
    return torch.sigmoid(x)
def _layernorm(x, axis=-1, eps=1e-5):
    m = x.mean(dim=axis, keepdim=True)
    v = x.var(dim=axis, keepdim=True, unbiased=False)
    return (x - m) / torch.sqrt(v + eps)
def _scatter_add(tgt, idx, src, axis=0):
    return tgt.clone().index_add_(axis, idx, src)
def _segment_sum(src, seg, n):
    out = torch.zeros((n,) + src.shape[1:], dtype=src.dtype)
    return out.index_add_(0, seg, src)
def _pad(x, pw):
    flat = tuple(v for pair in reversed(pw) for v in pair)
    return torch.nn.functional.pad(x, flat)

kernel_name = 'concat_heads__spectral_gfnet__compressed_kv_cla__prompt'

def setup_inputs():

    _w = (lambda a: (lambda t: t.to(torch.bfloat16) if t.is_floating_point() else t)(torch.as_tensor(a)))
    def _A_setup():
        B, S, D = 1, 2048, 448
        Df = D // 2 + 1
        return {
            "x": _w((lambda *s: torch.randn(*s, dtype=torch.bfloat16) * 0.05)(B, S, D)),
            "w_r": _w((lambda *s: torch.randn(*s, dtype=torch.bfloat16) * 0.05)(S, Df) * 0.02),
            "w_i": _w((lambda *s: torch.randn(*s, dtype=torch.bfloat16) * 0.05)(S, Df) * 0.02),
        }
    _A_in = _A_setup()

    def _B_setup():
        B, H, Sq, Sk, D, M = 1, 16, 2048, 2048, 256, 448
        Dc = 4 * D
        return {
            "x": _w((lambda *s: torch.randn(*s, dtype=torch.bfloat16) * 3.2)(B, Sq, M)),
            "c_kv": _w((lambda *s: torch.randn(*s, dtype=torch.bfloat16) * 0.05)(B, Sk, Dc)),
            "w_q": _w((lambda *s: torch.randn(*s, dtype=torch.bfloat16) * 3.2)(M, H, D) * (M ** -0.5)),
            "w_uk": _w((lambda *s: torch.randn(*s, dtype=torch.bfloat16) * 3.2)(Dc, H, D) * (Dc ** -0.5)),
            "w_uv": _w((lambda *s: torch.randn(*s, dtype=torch.bfloat16) * 0.05)(Dc, H, D) * (Dc ** -0.5)),
            "w_o": _w((lambda *s: torch.randn(*s, dtype=torch.bfloat16) * 0.05)(H, D, M) * ((H * D) ** -0.5)),
        }
    _B_in = _B_setup()

    return {
        "A_x": _A_in["x"],
        "A_w_r": _A_in["w_r"],
        "A_w_i": _A_in["w_i"],
        "B_x": _B_in["x"],
        "B_c_kv": _B_in["c_kv"],
        "B_w_q": _B_in["w_q"],
        "B_w_uk": _B_in["w_uk"],
        "B_w_uv": _B_in["w_uv"],
        "B_w_o": _B_in["w_o"],
    }

def reference(A_x, A_w_r, A_w_i, B_x, B_c_kv, B_w_q, B_w_uk, B_w_uv, B_w_o):
    def _A_ref(x, w_r, w_i):
        B, S, D = x.shape
        X = (lambda x, axes=(-2,-1): torch.fft.rfft2(x.float(), dim=axes))(x, axes=(-2, -1))
        W = w_r + 1j * w_i
        X = X * W
        y = (lambda x, s, axes=(-2,-1): torch.fft.irfft2(x, s=s, dim=axes).to(torch.bfloat16))(X, (S, D), axes=(-2, -1))
        return y

    def _B_ref(x, c_kv, w_q, w_uk, w_uv, w_o):
        B, Sq, M = x.shape[0], x.shape[1], x.shape[2]
        Sk = c_kv.shape[1]
        H, D = w_q.shape[1], w_q.shape[2]
        q = torch.einsum("bqm,mhd->bhqd", x, w_q)
        k = torch.einsum("bkc,chd->bhkd", c_kv, w_uk)
        v = torch.einsum("bkc,chd->bhkd", c_kv, w_uv)
        scores = torch.einsum("bhqd,bhkd->bhqk", q, k) * (D ** -0.5)
        off = Sk - Sq
        qi = torch.arange(Sq)[:, None]
        kj = torch.arange(Sk)[None, :]
        cmask = kj <= (qi + off)
        scores = torch.where(cmask[None, None], scores, -1e9)
        p = _softmax(scores, axis=-1)
        ctx = torch.einsum("bhqk,bhkd->bhqd", p, v)
        return torch.einsum("bhqd,hdm->bqm", ctx, w_o)

    a = _A_ref(A_x, A_w_r, A_w_i)
    b = _B_ref(B_x, B_c_kv, B_w_q, B_w_uk, B_w_uv, B_w_o)
    return torch.concatenate([a, b], axis=-1)
```

```python
import re

TRANS = ("v_exp_f32", "v_log_f32", "v_rcp_f32", "v_rsq_f32", "v_sqrt_f32", "v_sin_f32", "v_cos_f32",
         "v_rcp_iflag_f32")


def parse_reg(tok):
    tok = tok.strip()
    if tok.startswith("-"):
        tok = tok[1:]
    if tok.startswith("abs(") and tok.endswith(")"):
        tok = tok[4:-1]
    if tok.startswith("|") and tok.endswith("|"):
        tok = tok[1:-1]
    m = re.fullmatch(r"([vas])(\d+)", tok)
    if m:
        return [(m.group(1), int(m.group(2)))]
    m = re.fullmatch(r"([vas])\[(\d+):(\d+)\]", tok)
    if m:
        return [(m.group(1), i) for i in range(int(m.group(2)), int(m.group(3)) + 1)]
    if tok == "vcc":
        return [("x", "vcc")]
    if tok in ("vcc_lo", "vcc_hi"):
        return [("x", "vcc")]
    if tok == "exec":
        return [("x", "exec")]
    if tok == "m0":
        return [("x", "m0")]
    return []


class Ins:
    __slots__ = ("text", "op", "kind", "rd", "wr", "passes", "srcA", "srcB", "srcC", "pre_wait", "pre_nop",
                 "x4store", "uid", "nowait")
    _n = 0

    def __init__(self, text, nowait=False):
        self.text = text
        self.uid = Ins._n
        Ins._n += 1
        self.pre_wait = {}
        self.pre_nop = 0
        self.nowait = nowait
        self.passes = 0
        self.srcA = self.srcB = self.srcC = ()
        self.x4store = False
        t = text.split(";")[0].strip()
        if t.startswith("@wait"):
            self.op = "waitpoint"
            self.kind = "waitpoint"
            self.rd = tuple(x for tok in t.split()[1:] for x in parse_reg(tok))
            self.wr = ()
            return
        if t.endswith(":") or t.startswith("."):
            self.op = "label"
            self.kind = "label"
            self.rd = self.wr = ()
            return
        parts = t.split(None, 1)
        op = parts[0]
        self.op = op
        rest = parts[1] if len(parts) > 1 else ""
        ops = [o.strip() for o in rest.split(",")] if rest else []
        mods = ""
        if ops:
            sp = ops[-1].split()
            if sp:
                ops[-1] = sp[0]
                mods = " ".join(sp[1:])
        R = [parse_reg(o) for o in ops]
        rd, wr = [], []
        flat = lambda L: [x for l in L for x in l]
        if op.startswith("v_mfma"):
            self.kind = "mfma"
            self.passes = 8 if "32x32x16" in op else 4
            assert "32x32x16" in op or "16x16x32" in op
            wr = R[0]
            self.srcA, self.srcB, self.srcC = tuple(R[1]), tuple(R[2]), tuple(R[3])
            rd = R[1] + R[2] + R[3]
        elif op.startswith("ds_read") or op.startswith("ds_bpermute") or op.startswith("ds_swizzle"):
            self.kind = "ds"
            wr = R[0]
            rd = flat(R[1:])
        elif op.startswith("ds_write"):
            self.kind = "ds"
            rd = flat(R)
        elif op.startswith("buffer_load") or op.startswith("global_load"):
            if " lds" in (" " + mods) or op.startswith("global_load_lds"):
                self.kind = "dma"
                rd = flat(R) + [("x", "m0")]
            else:
                self.kind = "vload"
                wr = R[0]
                rd = flat(R[1:])
        elif op.startswith("buffer_store") or op.startswith("global_store"):
            self.kind = "vstore"
            rd = flat(R)
            self.x4store = "x4" in op or "x3" in op
        elif op.startswith("buffer_atomic"):
            self.kind = "vload" if "sc0" in mods else "vstore"
            rd = flat(R)
            if "sc0" in mods:
                wr = R[0]
        elif op in ("buffer_inv", "buffer_wbl2"):
            self.kind = "vstore"
        elif op.startswith("s_load") or op in ("s_memtime", "s_memrealtime"):
            self.kind = "smem"
            wr = R[0]
            rd = flat(R[1:])
        elif op == "s_waitcnt":
            self.kind = "wait"
        elif op == "s_nop":
            self.kind = "nop"
        elif op in ("s_barrier", "s_endpgm", "s_sleep", "s_setprio"):
            self.kind = "misc"
        elif op.startswith("s_cbranch") or op == "s_branch":
            self.kind = "branch"
            if "vcc" in op:
                rd = [("x", "vcc")]
            elif "scc" in op:
                rd = [("x", "scc")]
            elif "exec" in op:
                rd = [("x", "exec")]
        elif op.startswith("s_cmp") or op.startswith("s_bitcmp"):
            self.kind = "salu"
            rd = flat(R)
            wr = [("x", "scc")]
        elif op.startswith("s_"):
            self.kind = "salu"
            wr = list(R[0])
            rd = flat(R[1:])
            if op in ("s_addk_i32", "s_mulk_i32"):
                rd += R[0]
            if "saveexec" in op:
                wr.append(("x", "exec"))
                rd.append(("x", "exec"))
            if op.startswith(("s_addc", "s_subb", "s_cselect")):
                rd.append(("x", "scc"))
            if not op.startswith(("s_mov", "s_mul", "s_cselect", "s_getreg", "s_movk")):
                wr.append(("x", "scc"))
        elif op.startswith("v_"):
            base = op.replace("_e32", "").replace("_e64", "").replace("_dpp", "")
            self.kind = "trans" if base in TRANS else "valu"
            if op.startswith("v_cmp"):
                wr = R[0]
                rd = flat(R[1:])
            elif op.startswith("v_permlane") and "swap" in op:
                wr = R[0] + R[1]
                rd = R[0] + R[1]
            elif op.startswith(("v_add_co", "v_sub_co", "v_addc_co", "v_subb_co")):
                wr = R[0] + R[1]
                rd = flat(R[2:])
            else:
                wr = list(R[0])
                rd = flat(R[1:])
                if base.startswith(("v_fmac", "v_mac", "v_dot2c", "v_writelane")) or "dpp" in op or "row_" in mods or "quad_perm" in mods:
                    rd += R[0]
                if base == "v_cndmask_b32" and len(ops) == 3:
                    rd.append(("x", "vcc"))
        else:
            raise ValueError("unknown op " + text)
        self.rd = tuple(rd)
        self.wr = tuple(wr)


class Loop:
    def __init__(self, body, sim=3):
        self.body = body
        self.sim = sim


class Alt:
    def __init__(self, body):
        self.body = body


class Opt:
    def __init__(self, body, name):
        self.body = body
        self.name = name


class Prog:
    def __init__(self):
        self.stack = [[]]
        self.tail = []

    def e(self, text, nowait=False):
        for line in text.split("\n"):
            line = line.strip()
            if not line:
                continue
            rd, wr = [], []
            while True:
                m = re.search(r"\s@([rw]):(\S+)$", line)
                if not m:
                    break
                (rd if m.group(1) == "r" else wr).extend(("t", x) for x in m.group(2).split(","))
                line = line[:m.start()].rstrip()
            i = Ins(line, nowait)
            i.rd = tuple(i.rd) + tuple(rd)
            i.wr = tuple(i.wr) + tuple(wr)
            self.stack[-1].append(i)

    def begin(self):
        self.stack.append([])

    def end_loop(self, sim=3):
        b = self.stack.pop()
        self.stack[-1].append(Loop(b, sim))

    def end_opt(self, name):
        b = self.stack.pop()
        self.stack[-1].append(Opt(b, name))

    def end_alt(self):
        b = self.stack.pop()
        a = Alt(b)
        self.stack[-1].append(a)
        self.tail.append(a)

    @property
    def nodes(self):
        assert len(self.stack) == 1
        return self.stack[0]


def trace(nodes, take_alt, opts=()):
    out = []
    for n in nodes:
        if isinstance(n, Ins):
            out.append(n)
        elif isinstance(n, Loop):
            for _ in range(n.sim):
                out += trace(n.body, take_alt, opts)
        elif isinstance(n, Alt):
            if take_alt:
                out += trace(n.body, take_alt, opts)
        elif isinstance(n, Opt):
            if n.name in opts:
                out += trace(n.body, take_alt, opts)
    return out


def parse_wait(text):
    d = {}
    for name in ("vmcnt", "lgkmcnt"):
        m = re.search(name + r"\((\d+)\)", text)
        if m:
            d[name] = int(m.group(1))
    return d


MAXC = {"vmcnt": 63, "lgkmcnt": 15}


def insert_waits(tr):
    changed = False
    q = {"vmcnt": [], "lgkmcnt": []}
    def apply(c, n):
        while len(q[c]) > n:
            q[c].pop(0)
    for ins in tr:
        if ins.kind == "label":
            continue
        for c, n in ins.pre_wait.items():
            apply(c, n)
        if ins.kind == "wait":
            for c, n in parse_wait(ins.text).items():
                apply(c, n)
            continue
        touched = set(ins.rd) | {r for r in ins.wr if r[0] != "t"}
        for c in q:
            need = None
            has_smem = any(s for _, s in q[c])
            for k, (dst, smem) in enumerate(q[c]):
                if dst & touched:
                    n = len(q[c]) - k - 1
                    if has_smem:
                        n = 0
                    need = n if need is None else min(need, n)
            if need is not None and not ins.nowait:
                need = min(need, MAXC[c])
                old = ins.pre_wait.get(c)
                if old is None or need < old:
                    ins.pre_wait[c] = need
                    changed = True
                apply(c, need)
        if ins.kind == "ds":
            q["lgkmcnt"].append((set(ins.wr), False))
        elif ins.kind == "smem":
            q["lgkmcnt"].append((set(ins.wr), True))
        elif ins.kind in ("vload", "vstore", "dma"):
            q["vmcnt"].append((set(ins.wr), False))
    return changed


def hazard_need(p, c):
    need = 0
    pw, cr, cw = set(p.wr), set(c.rd), set(c.wr)
    isv = lambda s: {r for r in s if r[0] in "va"}
    iss = lambda s: {r for r in s if r[0] == "s" or r == ("x", "vcc")}
    pvalu = p.kind in ("valu", "trans")
    cvalu = c.kind in ("valu", "trans")
    if pvalu:
        if c.kind == "mfma" and isv(pw) & cr:
            need = max(need, 2)
        if c.kind == "mfma" and ("x", "exec") in pw:
            need = max(need, 4)
        if c.kind in ("vload", "vstore", "dma") and iss(pw) & cr:
            need = max(need, 5)
        if cvalu and iss(pw) & cr:
            need = max(need, 4 if c.op.startswith(("v_readlane", "v_writelane")) else 2)
        if cvalu and c.op.startswith(("v_readfirstlane", "v_readlane")) and isv(pw) & cr:
            need = max(need, 1)
        if cvalu and c.op.startswith("v_permlane") and isv(pw) & cr:
            need = max(need, 2)
        if cvalu and ("dpp" in c.text or "row_" in c.text or "quad_perm" in c.text) and isv(pw) & cr:
            need = max(need, 2)
        if p.kind == "trans" and c.kind == "valu" and isv(pw) & cr:
            need = max(need, 1)
        if c.kind == "salu" and iss(pw) & cr:
            need = max(need, 1)
        if c.kind == "branch" and iss(pw) & cr:
            need = max(need, 1)
    if p.kind == "mfma":
        big = 12 if p.passes == 8 else 8
        if c.kind == "mfma":
            if pw & (set(c.srcA) | set(c.srcB)):
                need = max(need, big)
            if pw & set(c.srcC):
                exact = tuple(p.wr) == c.srcC and p.passes == c.passes
                if not exact:
                    need = max(need, 10 if p.passes == 8 else 6)
            elif pw & cw:
                need = max(need, 10 if p.passes == 8 else 6)
        else:
            if cvalu and pw & (cr | cw):
                need = max(need, big)
            if c.kind in ("ds", "vload", "vstore", "dma") and pw & (cr | cw):
                need = max(need, big)
            if cvalu and set(p.srcC) & cw:
                need = max(need, 7 if p.passes == 8 else 3)
    if p.kind == "salu" and ("x", "m0") in pw and c.kind == "dma":
        need = max(need, 1)
    if p.kind == "vstore" and p.x4store:
        data = isv(set(p.rd))
        if data & cw:
            need = max(need, 2 if cvalu else 1)
    if p.kind == "ds" and p.op in ("ds_write_b128", "ds_write_b96") and cvalu and isv(set(p.rd)) & cw:
        need = max(need, 2)
    return need


def states(ins):
    if ins.kind in ("label", "waitpoint"):
        return 0
    if ins.kind == "nop":
        return int(ins.text.split()[1]) + 1
    return 1


def insert_nops(tr):
    changed = False
    hist = []
    for ins in tr:
        if ins.kind == "label":
            continue
        pre = ins.pre_nop
        dist = pre
        need_extra = 0
        for p in reversed(hist):
            if dist >= 20:
                break
            n = hazard_need(p, ins)
            if n > dist:
                need_extra = max(need_extra, n - dist)
            dist += states(p) + p.pre_nop
        if need_extra:
            ins.pre_nop += need_extra
            changed = True
        hist.append(ins)
        if len(hist) > 24:
            hist.pop(0)
    return changed


def finalize(prog, verbose=True):
    return finalize_multi({"m": prog}, [(["m"], ())], ["m"], verbose)


def finalize_multi(blocks, paths, layout, verbose=True):
    trs = []
    for names, opts in paths:
        for alt in (False, True):
            t = []
            for nm in names:
                t += trace(blocks[nm].nodes, alt, opts)
            trs.append(t)
    for _ in range(20):
        ch = False
        for tr in trs:
            ch |= insert_waits(tr)
        if not ch:
            break
    for _ in range(20):
        ch = False
        for tr in trs:
            ch |= insert_nops(tr)
        if not ch:
            break
    out = []
    stats = {"wait": 0, "nop": 0}

    def emit(nodes):
        for n in nodes:
            if isinstance(n, Ins):
                if n.pre_wait:
                    out.append("s_waitcnt " + " ".join(f"{c}({v})" for c, v in sorted(n.pre_wait.items(), reverse=True)))
                    stats["wait"] += 1
                k = n.pre_nop
                while k > 0:
                    m = min(k, 16)
                    out.append(f"s_nop {m-1}")
                    stats["nop"] += 1
                    k -= m
                if n.kind != "waitpoint":
                    out.append(n.text)
            elif isinstance(n, (Loop, Opt)):
                emit(n.body)
            elif isinstance(n, Alt):
                pass
    for nm in layout:
        emit(blocks[nm].nodes)
    for nm in layout:
        for a in blocks[nm].tail:
            emit(a.body)
    merged = []
    for line in out:
        if merged and line.startswith("s_waitcnt") and merged[-1].startswith("s_waitcnt"):
            a, b = parse_wait(merged[-1]), parse_wait(line)
            for c, v in b.items():
                a[c] = min(a.get(c, v), v)
            merged[-1] = "s_waitcnt " + " ".join(f"{c}({v})" for c, v in sorted(a.items(), reverse=True)) + " ; merged"
            stats["merged"] = stats.get("merged", 0) + 1
        else:
            merged.append(line)
    out = merged
    if verbose:
        print("auto waits:", stats["wait"], "auto nops:", stats["nop"], "lines:", len(out))
    return "\n".join(out)


def weave(p, mfmas, fill):
    for s in fill.get(-1, []):
        p.e(s)
    for i, m in enumerate(mfmas):
        p.e(m)
        for s in fill.get(i, []):
            p.e(s)
    extra = [k for k in fill if k >= len(mfmas)]
    assert not extra, extra


class Fill(dict):
    def add(self, i, s):
        self.setdefault(i, []).append(s)

    def spread(self, items, start, step):
        for k, s in enumerate(items):
            self.add(int(start + k * step), s)


def descriptor(name, nvgpr=512, accum=256, nsgpr=102):
    return f""".p2align 6
.amdhsa_kernel {name}
  .amdhsa_next_free_vgpr {nvgpr}
  .amdhsa_next_free_sgpr {nsgpr}
  .amdhsa_accum_offset {accum}
  .amdhsa_group_segment_fixed_size 0
  .amdhsa_kernarg_size 96
  .amdhsa_user_sgpr_count 2
  .amdhsa_user_sgpr_kernarg_segment_ptr 1
  .amdhsa_system_sgpr_workgroup_id_x 1
  .amdhsa_float_denorm_mode_32 3
.end_amdhsa_kernel"""


class Sched:
    def __init__(self, n, cap=2):
        self.n = n
        self.cap = cap
        self.used = [0] * n
        self.fill = Fill()
        self.last = {}
        self.after = []

    def place(self, text, g, cost=1, stream=None, force=False):
        g = max(0, int(g))
        if stream is not None:
            g = max(g, self.last.get(stream, 0))
        if not force:
            while g < self.n and self.used[g] + cost > self.cap:
                g += 1
        if g >= self.n:
            self.after.append(text)
            g = self.n
        else:
            self.used[g] += cost
            self.fill.add(g, text)
        if stream is not None:
            self.last[stream] = g
        return g

    def emit(self, p, mfmas):
        assert len(mfmas) == self.n
        weave(p, mfmas, self.fill)
        for t in self.after:
            p.e(t)


class Item:
    __slots__ = ("text", "cost", "lo", "dl", "deps", "gap", "seq")

    def __init__(self, text, cost, lo, dl, deps):
        self.text, self.cost, self.lo, self.dl, self.deps = text, cost, lo, dl, deps
        self.gap = None


class LSched:
    def __init__(self, n, cap=2):
        self.n = n
        self.cap = cap
        self.items = []
        self.fixed = {}

    def add(self, text, lo=0, dl=None, cost=1, deps=()):
        deps = [(d, 0) if isinstance(d, Item) else d for d in deps if d is not None]
        it = Item(text, cost, lo, lo if dl is None else dl, deps)
        it.seq = len(self.items)
        self.items.append(it)
        return it

    def fix(self, text, g, cost=1):
        it = Item(text, cost, g, g, [])
        it.gap = g
        it.seq = -1
        self.fixed.setdefault(g, []).append(it)
        return it

    def chain(self, texts, lo, dl0=None, dl1=None, dep=None, dist=0):
        prev = dep
        out = []
        n = len(texts)
        for k, t in enumerate(texts):
            c = 1
            if isinstance(t, tuple):
                t, c = t
            dl = None if dl0 is None else dl0 + ((dl1 - dl0) * k / max(1, n - 1) if dl1 is not None else 0)
            prev = self.add(t, lo, dl, c, [(prev, dist)] if prev is not None else [])
            out.append(prev)
        return out

    def run(self):
        fill = Fill()
        todo = list(self.items)
        g = 0
        self.wasted = 0
        while todo or g < self.n:
            cap = self.cap if g < self.n else 10 ** 9
            for it in self.fixed.get(g, []):
                fill.add(min(g, self.n - 1), it.text)
                cap -= it.cost
            while cap > 0 and todo:
                best = None
                for it in todo:
                    if it.lo > g and g < self.n:
                        continue
                    if it.cost > cap:
                        continue
                    ok = True
                    for d, dist in it.deps:
                        if d.gap is None or (d.gap + dist > g and g < self.n):
                            ok = False
                            break
                    if ok and (best is None or (it.dl, it.seq) < (best.dl, best.seq)):
                        best = it
                if best is None:
                    break
                best.gap = g
                todo.remove(best)
                cap -= best.cost
                fill.add(min(g, self.n - 1), best.text)
            if g < self.n and cap > 0:
                self.wasted += cap
            g += 1
            if g > self.n + 2 and todo:
                raise RuntimeError("unschedulable: " + todo[0].text)
        self.fill = fill
        self.overflow = sum(1 for it in self.items if it.gap >= self.n)
        return fill

    def emit(self, p, mfmas):
        assert len(mfmas) == self.n
        weave(p, mfmas, self.run())
```

```python
from asmfw import *
import struct
WS_K = 0
WS_V = 16 << 20
WS_Q = 32 << 20
WS_CTX = 48 << 20
WS_PART = 64 << 20
WS_Z = 96 << 20
WS_U = 100 << 20
WS_TF = 104 << 20
WS_TG = 105 << 20
WS_DBG = 128 << 20
LDS_MAX = 163840

def f32(x):
    return "0x%08x" % struct.unpack("<I", struct.pack("<f", x))[0]

def vr(b, n=4):
    return f"v[{b}:{b+n-1}]" if n > 1 else f"v{b}"
def ar(b, n=4):
    return f"a[{b}:{b+n-1}]" if n > 1 else f"a{b}"
def sr(b, n=4):
    return f"s[{b}:{b+n-1}]" if n > 1 else f"s{b}"

def mfma16(d, a, b, c):
    return f"v_mfma_f32_16x16x32_bf16 {d}, {a}, {b}, {c}"

def srd_from(p, srd, ptr, off_sgpr=None, off_imm=0, size=None, size_sgpr=None):
    if off_sgpr is None and off_imm == 0:
        p.e(f"s_mov_b32 s{srd}, s{ptr}\ns_mov_b32 s{srd+1}, s{ptr+1}")
    else:
        if off_sgpr is not None:
            p.e(f"s_add_u32 s{srd}, s{ptr}, s{off_sgpr}\ns_addc_u32 s{srd+1}, s{ptr+1}, 0")
            if off_imm:
                p.e(f"s_add_u32 s{srd}, s{srd}, {off_imm}\ns_addc_u32 s{srd+1}, s{srd+1}, 0")
        else:
            p.e(f"s_add_u32 s{srd}, s{ptr}, {off_imm}\ns_addc_u32 s{srd+1}, s{ptr+1}, 0")
    if size_sgpr is not None:
        p.e(f"s_mov_b32 s{srd+2}, s{size_sgpr}")
    elif off_sgpr is not None:
        p.e(f"s_sub_u32 s{srd+2}, {size}, s{off_sgpr}")
    else:
        p.e(f"s_mov_b32 s{srd+2}, {size}")
    p.e(f"s_mov_b32 s{srd+3}, 0x20000")

def kernel_text(name, body):
    return f".p2align 8\n.type {name},@function\n{name}:\n{body}\n"

def stamp(p, slot, sreg=96):
    p.e(f"s_memrealtime s[{sreg}:{sreg+1}]\ns_memtime s[{sreg+2}:{sreg+3}]\ns_waitcnt lgkmcnt(0)\nv_writelane_b32 v11, s{sreg}, {slot}\nv_writelane_b32 v11, s{sreg+2}, {8+slot}")

def diag_store(p, region, ws_ptr, s_wave, t0, t1):
    e = p.e
    e("s_waitcnt vmcnt(0)")
    stamp(p, 7)
    e(f"s_lshl_b32 s{t0}, s2, 8\ns_lshl_b32 s{t1}, s{s_wave}, 6\ns_add_u32 s{t0}, s{t0}, s{t1}")
    srd_from(p, 84, ws_ptr, off_sgpr=None, off_imm=WS_DBG + region * 65536, size=65536)
    e("v_mbcnt_lo_u32_b32 v12, -1, 0\nv_mbcnt_hi_u32_b32 v12, -1, v12\nv_lshlrev_b32 v13, 2, v12")
    e(f"v_add_u32 v13, s{t0}, v13\nv_cmp_gt_u32 vcc, 16, v12\ns_and_saveexec_b64 s[88:89], vcc")
    e("buffer_store_dword v11, v13, s[84:87], 0 offen")
    e("s_waitcnt vmcnt(0)")
```

```python
from common import *

WS_WT = WS_TF
PERMOFF = [0, 1, 2, 3, 16, 17, 18, 19]


def gen_trig_frag(e, dst, vq, vbase, ks_consts, tmp, op="v_cos_f32"):
    for i, K in enumerate(ks_consts):
        t = tmp + (i % 4)
        if K == 0:
            e(f"{op} v{t}, v{vbase}")
        else:
            e(f"v_fmamk_f32 v{t}, v{vq}, {f32(float(K))}, v{vbase}")
            e(f"{op} v{t}, v{t}")
        if i % 2 == 1:
            e(f"v_cvt_pk_bf16_f32 v{dst + i//2}, v{tmp + (i-1) % 4}, v{t}")


def gen_a1(opts):
    p = Prog()
    e = p.e
    S_X, S_Z, S_WR, S_WI, S_WT = 4, 8, 12, 16, 20
    W, T0, T1, SP, FG = 40, 41, 42, 43, 44
    e("s_cmp_ge_u32 s2, 256\ns_cbranch_scc1 L_a1_end")
    e("s_load_dwordx4 s[72:75], s[0:1], 0\ns_load_dwordx2 s[76:77], s[0:1], 16\ns_load_dwordx2 s[82:83], s[0:1], 88")
    e(f"v_lshrrev_b32 v12, 6, v0\nv_mov_b32 v20, v0\nv_and_b32 v0, 63, v0\nv_readfirstlane_b32 s{W}, v12")
    e(f"s_mul_i32 s{SP}, s2, 9363\ns_lshr_b32 s{SP}, s{SP}, 16\ns_mul_i32 s{T0}, s{SP}, 7\ns_sub_u32 s{FG}, s2, s{T0}")
    e("s_waitcnt lgkmcnt(0)")
    srd_from(p, S_WR, 74, size=2048*225*2)
    srd_from(p, S_WI, 76, size=2048*225*2)
    srd_from(p, S_WT, 82, off_imm=WS_WT, size=225*8192)
    e(f"s_and_b32 s{T0}, s2, 7\ns_mul_i32 s{T0}, s{T0}, 29")
    e(f"v_and_b32 v21, 31, v20\nv_add_u32 v22, s{T0}, v21")
    e(f"s_lshr_b32 s{T0}, s2, 3\ns_and_b32 s{T1}, s{T0}, 1\ns_lshl_b32 s{T1}, s{T1}, 4\ns_lshr_b32 s45, s{T0}, 1\ns_lshl_b32 s46, s45, 7\ns_add_u32 s46, s46, s{T1}")
    e(f"v_lshrrev_b32 v23, 5, v20\nv_add_u32 v24, s46, v23")
    e(f"v_mul_u32_u24 v24, 225, v24\nv_add_lshl_u32 v24, v24, v22, 1")
    e(f"s_lshr_b32 s46, s{T0}, 3\ns_lshl_b32 s46, s46, 1\ns_and_b32 s47, s{T0}, 1\ns_add_u32 s46, s46, s47\ns_lshl_b32 s46, s46, 10")
    e(f"s_and_b32 s45, s45, 3\ns_lshl_b32 s45, s45, 8\ns_add_u32 s46, s46, s45")
    e(f"v_lshlrev_b32 v25, 13, v22\nv_lshl_add_u32 v25, v23, 4, v25\nv_add_u32 v25, s46, v25")
    e(f"v_cmp_gt_u32 vcc, 29, v21\nv_mov_b32 v26, 0x7fffffff\nv_cndmask_b32 v25, v26, v25, vcc\nv_cndmask_b32 v24, v26, v24, vcc")
    e(f"v_cmp_gt_u32 vcc, 225, v22\ns_nop 1\nv_cndmask_b32 v25, v26, v25, vcc\nv_cndmask_b32 v24, v26, v24, vcc")
    for r in range(4):
        e(f"s_mov_b32 s{48+r}, {r*14400}")
    for rho in range(2):
        for a, srd in enumerate((S_WR, S_WI)):
            for r in range(4):
                e(f"buffer_load_ushort v{32 + rho*8 + a*4 + r}, v24, {sr(srd)}, s{48+r} offen offset:{rho*3600}")
    e("s_cmp_ge_u32 s2, 224\ns_cbranch_scc1 L_a1_wt")
    p.begin()
    srd_from(p, S_X, 72, size=2048*448*2)
    srd_from(p, S_Z, 82, off_imm=WS_Z, size=448*4096)
    e(f"s_lshr_b32 s{T0}, s{W}, 1\ns_lshl_b32 s{T0}, s{T0}, 2\ns_and_b32 s{T1}, s{W}, 1\ns_add_u32 s{T0}, s{T0}, s{T1}\ns_lshl_b32 s{T0}, s{T0}, 1")
    e(f"v_bfe_u32 v12, v0, 4, 1\nv_lshlrev_b32 v12, 4, v12\nv_bfe_u32 v13, v0, 3, 1\nv_add3_u32 v12, v12, v13, s{T0}")
    e(f"s_lshl_b32 s{T0}, s{SP}, 1\nv_lshrrev_b32 v13, 5, v0\nv_lshlrev_b32 v12, 6, v12\nv_add3_u32 v12, v12, v13, s{T0}")
    e(f"v_mul_u32_u24 v12, 896, v12\nv_and_b32 v13, 7, v0\nv_lshl_add_u32 v1, v13, 4, v12")
    e(f"s_mul_i32 s{T0}, s{W}, 2080")
    for kt in range(7):
        e(f"s_add_u32 m0, s{T0}, {kt*8288}\ns_mov_b32 s52, {kt*128}\ns_mov_b32 s53, {kt*128 + 229376 - 1024}")
        e(f"buffer_load_dwordx4 v1, {sr(S_X)}, s52 offen lds @w:X")
        e(f"buffer_load_dwordx4 v1, {sr(S_X)}, s53 offen offset:1024 lds @w:X")
    e("v_bfe_u32 v11, v0, 3, 1\nv_lshlrev_b32 v11, 2, v11")
    e("v_bfe_u32 v12, v0, 1, 1\nv_lshl_or_b32 v11, v12, 1, v11")
    e("v_bfe_u32 v12, v0, 2, 1\nv_or_b32 v11, v11, v12")
    e("v_lshrrev_b32 v12, 1, v11\nv_lshlrev_b32 v12, 5, v12")
    e("v_and_b32 v13, 1, v0\nv_lshl_add_u32 v12, v13, 7, v12")
    e("v_lshrrev_b32 v13, 4, v0\nv_lshl_add_u32 v12, v13, 4, v12")
    e("v_lshl_add_u32 v2, v11, 10, v12")
    e(f"s_lshl_b32 s{T0}, s{FG}, 6\ns_lshl_b32 s{T1}, s{W}, 4\ns_add_u32 s{T0}, s{T0}, s{T1}")
    e(f"v_and_b32 v3, 15, v0\nv_add_u32 v3, s{T0}, v3")
    e(f"v_subrev_u32 v4, 224, v3\nv_cmp_lt_u32 vcc, 224, v3\nv_mov_b32 v6, 0\nv_mov_b32 v7, {f32(0.25)}")
    e(f"v_cndmask_b32 v4, v3, v4, vcc\nv_cndmask_b32 v6, v6, v7, vcc")
    e(f"v_cvt_f32_u32 v4, v4\nv_mul_f32 v4, {f32(1/448)}, v4")
    e(f"v_lshrrev_b32 v5, 4, v0\nv_lshlrev_b32 v5, 3, v5\nv_cvt_f32_u32 v5, v5\nv_fma_f32 v5, v5, v4, v6")
    for ks in range(14):
        gen_trig_frag(e, 64 + 4 * ks, 4, 5, [32 * ks + i for i in range(8)], 12)
    e(f"s_lshl_b32 s{T0}, s{SP}, 7\nv_lshrrev_b32 v5, 4, v0\nv_lshlrev_b32 v5, 4, v5\nv_lshl_add_u32 v3, v3, 12, v5\nv_add_u32 v3, s{T0}, v3")
    e("s_barrier @r:X")
    rd = [(ks, mb) for ks in range(14) for mb in range(4)]
    def rdi(i):
        ks, mb = rd[i]
        return f"ds_read_b128 {ar(4*(i % 16))}, v2 offset:{(ks >> 1)*8288 + mb*256 + (ks & 1)*64}"
    for i in range(12):
        e(rdi(i))
    for i, (ks, mb) in enumerate(rd):
        d = vr(128 + 4 * mb)
        e(mfma16(d, ar(4 * (i % 16)), vr(64 + 4 * ks), d if ks else "0"))
        if i + 12 < len(rd):
            e(rdi(i + 12))
    sc1 = " sc1" if opts.get("sc1") else ""
    for u in range(2):
        b0, b1 = 128 + 8 * u, 132 + 8 * u
        e(f"v_cvt_pk_bf16_f32 v{b0}, v{b0}, v{b0+1}\nv_cvt_pk_bf16_f32 v{b0+1}, v{b0+2}, v{b0+3}")
        e(f"v_cvt_pk_bf16_f32 v{b0+2}, v{b1}, v{b1+1}\nv_cvt_pk_bf16_f32 v{b0+3}, v{b1+2}, v{b1+3}")
        e(f"buffer_store_dwordx4 {vr(b0)}, v3, {sr(S_Z)}, 0 offen offset:{u*64}{sc1}")
    p.end_opt("a1")
    e("L_a1_wt:")
    for rho in range(2):
        for k in range(4):
            b = 32 + rho * 8 + 2 * k
            e(f"v_lshl_or_b32 v{48 + rho*4 + k}, v{b+1}, 16, v{b}")
        e(f"buffer_store_dwordx4 {vr(48 + rho*4)}, v25, {sr(S_WT)}, 0 offen offset:{rho*128}{sc1}")
    e("L_a1_end:\ns_endpgm")
    return finalize_multi({"m": p}, [(["m"], {"a1"}), (["m"], set())], ["m"])


def gen_a2(opts):
    p = Prog()
    e = p.e
    S_Z, S_WT, S_U = 4, 8, 12
    W, T0, T1, F, SRE, SIM = 40, 41, 42, 43, 44, 45
    e("s_cmp_ge_u32 s2, 57\ns_cbranch_scc1 L_a2_end")
    e("s_load_dwordx2 s[82:83], s[0:1], 88")
    e(f"v_lshrrev_b32 v12, 6, v0\nv_and_b32 v0, 63, v0\nv_readfirstlane_b32 s{W}, v12")
    e(f"s_lshl_b32 s{F}, s2, 2\ns_add_u32 s{F}, s{F}, s{W}\ns_cmp_ge_u32 s{F}, 225\ns_cbranch_scc1 L_a2_end")
    e("s_waitcnt lgkmcnt(0)")
    srd_from(p, S_Z, 82, off_imm=WS_Z, size=448*4096)
    srd_from(p, S_WT, 82, off_imm=WS_WT, size=225*8192)
    srd_from(p, S_U, 82, off_imm=WS_U, size=448*4096)
    a2_body(p, S_Z, S_WT, S_U, F, SRE, SIM, T0, T1, opts)
    e("L_a2_end:\ns_endpgm")
    return finalize(p)


def a2_body(p, S_Z, S_WT, S_U, F, SRE, SIM, T0, T1, opts):
    e = p.e
    ZD = 16
    D = 48
    TWF = 112
    TWI = 176
    TMP = 240
    C32, S32, N32 = 0, 8, 16
    C64, S64, N64 = 24, 56, 88
    WD = 120
    vL16, vZ, vG, vI = 1, 2, 3, 4
    e(f"s_lshl_b32 s{SRE}, s{F}, 12\ns_add_u32 s{SIM}, s{SRE}, {224*4096}")
    e(f"s_cmp_eq_u32 s{F}, 0\ns_cselect_b32 s{SIM}, 0x7ff00000, s{SIM}\ns_cmp_eq_u32 s{F}, 224\ns_cselect_b32 s{SIM}, 0x7ff00000, s{SIM}")
    e(f"v_lshlrev_b32 v{vL16}, 4, v0\nv_and_b32 v{vI}, 15, v0\nv_lshrrev_b32 v{vG}, 4, v0")
    e(f"v_lshlrev_b32 v{vZ}, 6, v{vI}\nv_lshl_add_u32 v{vZ}, v{vG}, 4, v{vZ}")
    for c, so in enumerate((SRE, SIM)):
        for sb in range(4):
            e(f"buffer_load_dwordx4 {vr(ZD + 16*c + 4*sb)}, v{vZ}, {sr(S_Z)}, s{so} offen offset:{sb*1024}")
    e(f"s_lshl_b32 s{T0}, s{F}, 13\ns_add_u32 s{T1}, s{T0}, 4096")
    for t in range(8):
        e(f"buffer_load_dwordx4 {ar(WD + 4*t)}, v{vL16}, {sr(S_WT)}, s{T0 if t < 4 else T1} offen offset:{(t & 3)*1024}")
    e(f"v_cvt_f32_u32 v5, v{vI}\nv_lshlrev_b32 v6, 2, v{vG}\nv_cvt_f32_u32 v6, v6")

    def const_frags(dst_c, dst_s, dst_n, nblk, nks, N):
        for b in range(nblk):
            e(f"v_add_f32 v7, {f32(16.0*b)}, v5\nv_mul_f32 v7, {f32(1.0/N)}, v7\nv_mul_f32 v8, v6, v7")
            for ks in range(nks):
                idx = b * nks + ks
                K = [32 * ks + o for o in PERMOFF]
                gen_trig_frag(e, TMP + 8, 7, 8, K, TMP)
                for k in range(4):
                    e(f"v_accvgpr_write_b32 a{dst_c + 4*idx + k}, v{TMP + 8 + k}")
                gen_trig_frag(e, TMP + 12, 7, 8, K, TMP, "v_sin_f32")
                for k in range(4):
                    e(f"v_accvgpr_write_b32 a{dst_s + 4*idx + k}, v{TMP + 12 + k}")
                    e(f"v_xor_b32 v{TMP + 12 + k}, 0x80008000, v{TMP + 12 + k}")
                    e(f"v_accvgpr_write_b32 a{dst_n + 4*idx + k}, v{TMP + 12 + k}")
    const_frags(C32, S32, N32, 2, 1, 32)
    for kb in range(2):
        e(f"v_add_f32 v7, {f32(16.0*kb)}, v5\nv_mul_f32 v7, {f32(1.0/2048)}, v7\nv_mul_f32 v8, v6, v7")
        for sb in range(4):
            for r in range(4):
                i = (sb * 2 + kb) * 4 + r
                e(f"v_fmamk_f32 v9, v7, {f32(16.0*sb + r)}, v8\nv_cos_f32 v{TWF+i}, v9\nv_sin_f32 v{TWF+32+i}, v9")
    const_frags(C64, S64, N64, 4, 2, 64)
    e(f"s_mov_b32 s{T0}, {f32(2.0/(2048*448))}\ns_cmp_eq_u32 s{SIM}, 0x7ff00000\ns_cselect_b32 s{T0}, {f32(1.0/(2048*448))}, s{T0}")
    for sb in range(4):
        e(f"v_add_f32 v7, {f32(16.0*sb)}, v5\nv_mul_f32 v7, {f32(1.0/2048)}, v7\nv_mul_f32 v8, v6, v7")
        for kb in range(2):
            for r in range(4):
                i = (sb * 2 + kb) * 4 + r
                e(f"v_fmamk_f32 v9, v7, {f32(16.0*kb + r)}, v8\nv_cos_f32 v{TWI+i}, v9\nv_sin_f32 v{TWI+32+i}, v9")
                e(f"v_mul_f32 v{TWI+i}, s{T0}, v{TWI+i}\nv_mul_f32 v{TWI+32+i}, s{T0}, v{TWI+32+i}")
    RE = lambda t: D + 4 * t
    IM = lambda t: D + 32 + 4 * t
    fre = lambda i: vr(ZD + 4 * i)
    fim = lambda i: vr(ZD + 16 + 4 * i)

    def cmul_pack(t, c, s, conj, dre, dim):
        for r in range(4):
            a, b = RE(t) + r, IM(t) + r
            e(f"v_mul_f32 v{TMP+r}, v{a}, v{c+r}\nv_mul_f32 v{TMP+4+r}, v{b}, v{c+r}")
            if not conj:
                e(f"v_fmac_f32 v{TMP+r}, v{b}, v{s+r}\nv_fma_f32 v{TMP+4+r}, -v{a}, v{s+r}, v{TMP+4+r}")
            else:
                e(f"v_fma_f32 v{TMP+r}, -v{b}, v{s+r}, v{TMP+r}\nv_fmac_f32 v{TMP+4+r}, v{a}, v{s+r}")
        e(f"v_cvt_pk_bf16_f32 v{dre}, v{TMP}, v{TMP+1}\nv_cvt_pk_bf16_f32 v{dre+1}, v{TMP+2}, v{TMP+3}")
        e(f"v_cvt_pk_bf16_f32 v{dim}, v{TMP+4}, v{TMP+5}\nv_cvt_pk_bf16_f32 v{dim+1}, v{TMP+6}, v{TMP+7}")

    for sb in range(4):
        for kb in range(2):
            t = sb * 2 + kb
            e(mfma16(vr(RE(t)), fre(sb), ar(C32 + 4*kb), "0"))
            e(mfma16(vr(RE(t)), fim(sb), ar(S32 + 4*kb), vr(RE(t))))
            e(mfma16(vr(IM(t)), fim(sb), ar(C32 + 4*kb), "0"))
            e(mfma16(vr(IM(t)), fre(sb), ar(N32 + 4*kb), vr(IM(t))))
    for sb in range(4):
        for kb in range(2):
            t = sb * 2 + kb
            i = (sb >> 1) * 2 + kb
            cmul_pack(t, TWF + 4*t, TWF + 32 + 4*t, False, ZD + 4*i + 2*(sb & 1), ZD + 16 + 4*i + 2*(sb & 1))
    for mb in range(4):
        for kb in range(2):
            t = mb * 2 + kb
            for ks in range(2):
                e(mfma16(vr(RE(t)), ar(C64 + 4*(mb*2+ks)), fre(ks*2+kb), vr(RE(t)) if ks else "0"))
                e(mfma16(vr(RE(t)), ar(S64 + 4*(mb*2+ks)), fim(ks*2+kb), vr(RE(t))))
            for ks in range(2):
                e(mfma16(vr(IM(t)), ar(C64 + 4*(mb*2+ks)), fim(ks*2+kb), vr(IM(t)) if ks else "0"))
                e(mfma16(vr(IM(t)), ar(N64 + 4*(mb*2+ks)), fre(ks*2+kb), vr(IM(t))))
    for mb in range(4):
        for kb in range(2):
            t = mb * 2 + kb
            for k in range(4):
                e(f"v_accvgpr_read_b32 v{8+k}, a{WD + 4*t + k}")
            for k in range(4):
                e(f"v_lshlrev_b32 v{TMP+8+2*k}, 16, v{8+k}\nv_and_b32 v{TMP+9+2*k}, 0xffff0000, v{8+k}")
            i = (mb >> 1) * 2 + kb
            cmul_pack(t, TMP + 8, TMP + 12, True, ZD + 4*i + 2*(mb & 1), ZD + 16 + 4*i + 2*(mb & 1))
    for sb in range(4):
        for kb in range(2):
            t = sb * 2 + kb
            for ks in range(2):
                e(mfma16(vr(RE(t)), fre(ks*2+kb), ar(C64 + 4*(sb*2+ks)), vr(RE(t)) if ks else "0"))
                e(mfma16(vr(RE(t)), fim(ks*2+kb), ar(N64 + 4*(sb*2+ks)), vr(RE(t))))
            for ks in range(2):
                e(mfma16(vr(IM(t)), fim(ks*2+kb), ar(C64 + 4*(sb*2+ks)), vr(IM(t)) if ks else "0"))
                e(mfma16(vr(IM(t)), fre(ks*2+kb), ar(S64 + 4*(sb*2+ks)), vr(IM(t))))
    for sb in range(4):
        for kb in range(2):
            t = sb * 2 + kb
            cmul_pack(t, TWI + 4*t, TWI + 32 + 4*t, True, ZD + 4*sb + 2*kb, ZD + 16 + 4*sb + 2*kb)
    for sb in range(4):
        for ib in range(2):
            t = sb * 2 + ib
            e(mfma16(vr(RE(t)), ar(C32 + 4*ib), fre(sb), "0"))
            e(mfma16(vr(RE(t)), ar(N32 + 4*ib), fim(sb), vr(RE(t))))
            e(mfma16(vr(IM(t)), ar(C32 + 4*ib), fim(sb), "0"))
            e(mfma16(vr(IM(t)), ar(S32 + 4*ib), fre(sb), vr(IM(t))))
    sc1 = " sc1" if opts.get("sc1") else ""
    for c, so in enumerate((SRE, SIM)):
        for sb in range(4):
            b0 = D + 32 * c + 8 * sb
            b1 = b0 + 4
            e(f"v_cvt_pk_bf16_f32 v{b0}, v{b0}, v{b0+1}\nv_cvt_pk_bf16_f32 v{b0+1}, v{b0+2}, v{b0+3}")
            e(f"v_cvt_pk_bf16_f32 v{b0+2}, v{b1}, v{b1+1}\nv_cvt_pk_bf16_f32 v{b0+3}, v{b1+2}, v{b1+3}")
            e(f"buffer_store_dwordx4 {vr(b0)}, v{vL16}, {sr(S_U)}, s{so} offen offset:{sb*1024}{sc1}")
```

```python
from common import *
import math

SLOT = 33024
LA = [0, SLOT]
LB = [2 * SLOT, 3 * SLOT]
LSP = 4 * SLOT
XSLOT = 16480
QW = [LB[0], LB[1], LA[1]]
QX = [LSP, LA[0], LA[0] + XSLOT]

S_C, S_W, S_O, S_X, S_WQ, S_QO = 4, 8, 12, 16, 20, 24
S_SOA, S_SOB, S_SOX = 32, 40, 48
S_M0A, S_M0B = 52, 56
S_MX = 60
S_MA1 = 61
S_WAVE, S_H, S_G, S_T0, S_T1, S_CNT, S_ST, S_SCALE = 62, 63, 64, 65, 66, 67, 68, 69
V_AR, V_BR, V_AD, V_BD, V_L16, V_XR, V_XD, V_WR_A1, V_WR_B, V_XR_SP = 1, 2, 3, 4, 5, 6, 7, 8, 9, 10
V_TMP = 12
A_B = [0, 64]
A_AR = 128
A_QW = 0
A_QX = [160, 176]


def acc_map(variant):
    if variant == "K":
        ag = [(7, 1), (7, 3), (7, 5), (7, 7)]
    else:
        ag = [(7, 4), (7, 5), (7, 6), (7, 7)]
    m = {}
    nv = 16
    for i in range(8):
        for j in range(8):
            if (i, j) in ag:
                m[(i, j)] = ("a", 240 + 4 * ag.index((i, j)))
            else:
                m[(i, j)] = ("v", nv)
                nv += 4
    assert nv == 256
    return m


def reg(t, n=4):
    return vr(t[1], n) if t[0] == "v" else ar(t[1], n)


def q_acc_map(variant, m):
    if variant == "K":
        freed = [m[(i, j)] for i in range(8) for j in (1, 3, 5, 7)]
    else:
        freed = [m[(i, j)] for i in (1, 3, 5, 7) for j in range(8)]
    order = list(range(12)) + [12, 14, 13, 15]
    q = {}
    for n, db in enumerate(order):
        q[(db, 0)] = freed[2 * n]
        q[(db, 1)] = freed[2 * n + 1]
    return q


def dma_A(slot):
    out = []
    for e in range(2):
        out.append(("m0", f"s_mov_b32 m0, s{S_M0A + 2*slot + e}"))
        for g in range(4):
            out.append(("dma", f"buffer_load_dwordx4 v{V_AD}, {sr(S_C)}, s{S_SOA + 4*e + g} offen offset:{g*1024} lds @w:LA{slot}"))
    out.append(("salu", f"s_add_u32 s{S_C}, s{S_C}, 128"))
    out.append(("salu", f"s_addc_u32 s{S_C+1}, s{S_C+1}, 0"))
    out.append(("salu", f"s_sub_u32 s{S_C+2}, s{S_C+2}, 128"))
    return out


def dma_W(srd, ldsbase, tag):
    out = []
    for e in range(2):
        if ldsbase in LB:
            out.append(("m0", f"s_mov_b32 m0, s{S_M0B + 2*LB.index(ldsbase) + e}"))
        else:
            assert ldsbase == LA[1]
            out.append(("m0", f"s_add_u32 m0, s{S_MA1}, {e*4128}"))
        for j in range(4):
            out.append(("dma", f"buffer_load_dwordx4 v{V_BD}, {sr(srd)}, s{S_SOB + 4*e + j} offen offset:{j*1024} lds @w:{tag}"))
    out.append(("salu", f"s_add_u32 s{srd}, s{srd}, {64*8192}"))
    out.append(("salu", f"s_addc_u32 s{srd+1}, s{srd+1}, 0"))
    out.append(("salu", f"s_sub_u32 s{srd+2}, s{srd+2}, {64*8192}"))
    return out


def dma_X(ldsbase, tag):
    out = [("m0", f"s_add_u32 m0, s{S_MX}, {ldsbase}")]
    for e in range(2):
        for g in range(2):
            out.append(("dma", f"buffer_load_dwordx4 v{V_XD}, {sr(S_X)}, s{S_SOX + 2*e + g} offen offset:{e*2048 + g*1024} lds @w:{tag}"))
    out.append(("salu", f"s_add_u32 s{S_X}, s{S_X}, 128"))
    out.append(("salu", f"s_addc_u32 s{S_X+1}, s{S_X+1}, 0"))
    out.append(("salu", f"s_sub_u32 s{S_X+2}, s{S_X+2}, 128"))
    return out


def place_dma(sc, items, start, step):
    g = start
    for kind, t in items:
        if kind == "dma":
            gg = sc.place(t, g, cost=2, stream="dma")
            g = gg + step
        elif kind == "m0":
            gg = sc.place(t, max(g - 1, sc.last.get("dma", -1) + 1), stream="dma")
            g = max(g, gg + 1)
        else:
            sc.place(t, sc.last.get("dma", 0) + 1, stream="dma")
    return g


def a_read(t, i, ks):
    return f"ds_read_b128 {ar(A_AR + 8*(i % 4) + 4*ks)}, v{V_AR} offset:{LA[t % 2] + i*256 + ks*64}"


def b_read(t, j, ks, half):
    return (f"ds_read_b64_tr_b16 {ar(A_B[t % 2] + 8*j + 4*ks + 2*half, 2)}, v{V_BR} "
            f"offset:{(t % 2)*SLOT + 2048*ks + 512*half + 32*j}")


def kv_mfmas(variant, m, t, i, first):
    out = []
    for j in range(8):
        for ks in range(2):
            cf = ar(A_AR + 8 * (i % 4) + 4 * ks)
            wf = ar(A_B[t % 2] + 8 * j + 4 * ks)
            d = reg(m[(i, j)])
            c = "0" if (first and ks == 0) else d
            out.append(mfma16(d, wf, cf, c) if variant == "K" else mfma16(d, cf, wf, c))
    return out


def pack_pair(T0, T1, scale=None):
    out = []
    assert T0[0] == "v"
    b0 = T0[1]
    if T1[0] == "a":
        for k in range(4):
            out.append(f"v_accvgpr_read_b32 v{V_TMP+k}, a{T1[1]+k}")
        b1 = V_TMP
    else:
        b1 = T1[1]
    if scale is not None:
        for k in range(4):
            out.append(f"v_mul_f32 v{b0+k}, s{scale}, v{b0+k}")
        for k in range(4):
            out.append(f"v_mul_f32 v{b1+k}, s{scale}, v{b1+k}")
    out.append(f"v_cvt_pk_bf16_f32 v{b0}, v{b0}, v{b0+1}")
    out.append(f"v_cvt_pk_bf16_f32 v{b0+1}, v{b0+2}, v{b0+3}")
    out.append(f"v_cvt_pk_bf16_f32 v{b0+2}, v{b1}, v{b1+1}")
    out.append(f"v_cvt_pk_bf16_f32 v{b0+3}, v{b1+2}, v{b1+3}")
    return out


def kv_pairs(variant, m):
    out = []
    if variant == "K":
        for i in range(8):
            for jj in range(4):
                out.append((i, m[(i, 2*jj)], m[(i, 2*jj+1)], i * 8192, jj * 1024))
    else:
        for u in range(4):
            for j in range(8):
                out.append((2*u + 1, m[(2*u, j)], m[(2*u+1, j)], (u >> 1) * 32768 + (j >> 1) * 4096,
                            (u & 1) * 1024 + (j & 1) * 2048))
    return out


def barrier(sc_or_p, tags):
    return ["s_waitcnt lgkmcnt(0)", "s_barrier" + (" @r:" + ",".join(tags) if tags else "")]


def qw_read(u, db, ks, half):
    base = QW[u % 3]
    if base == LA[1]:
        v, off = V_WR_A1, 0
    else:
        v, off = V_WR_B, base - LB[0]
    return (f"ds_read_b64_tr_b16 {ar(A_QW + 8*(db % 8) + 4*ks + 2*half, 2)}, v{v} "
            f"offset:{off + 2048*ks + 512*half + 32*db}")


def qx_read(u, qb, ks):
    base = QX[u % 3]
    if base == LSP:
        v, off = V_XR_SP, 0
    else:
        v, off = V_XR, base
    return f"ds_read_b128 {ar(A_QX[u % 2] + 8*qb + 4*ks)}, v{v} offset:{off + qb*256 + ks*64}"


def q_mfmas(q, u, db):
    out = []
    for qb in range(2):
        for ks in range(2):
            wf = ar(A_QW + 8 * (db % 8) + 4 * ks)
            xf = ar(A_QX[u % 2] + 8 * qb + 4 * ks)
            d = reg(q[(db, qb)])
            c = "0" if (u == 0 and ks == 0) else d
            out.append(mfma16(d, wf, xf, c))
    return out


def gen_variant_full(p, variant, opts):
    m = acc_map(variant)
    q = q_acc_map(variant, m)
    sc1 = " sc1" if opts.get("sc1") else ""
    pairs = kv_pairs(variant, m)
    stores = []
    for (rdy, T0, T1, so, imm) in pairs:
        stores.append([f"s_mov_b32 s{S_ST}, {so}",
                       f"buffer_store_dwordx4 {reg(T0)}, v{V_L16}, {sr(S_O)}, s{S_ST} offen offset:{imm}{sc1}"])
    st_next = [0]

    def place_stores(sc, n, start, step):
        g = start
        for _ in range(n):
            if st_next[0] >= len(stores):
                return
            a, b = stores[st_next[0]]
            st_next[0] += 1
            gg = sc.place(a, g, stream="st")
            gg = sc.place(b, gg + 1, cost=2, stream="st")
            g = gg + step

    def kv_interval(t, last_tags):
        mf = []
        if t >= 1:
            mf += kv_mfmas(variant, m, t - 1, 6, t == 1) + kv_mfmas(variant, m, t - 1, 7, t == 1)
        base = len(mf)
        for i in range(6):
            mf += kv_mfmas(variant, m, t, i, t == 0)
        sc = Sched(len(mf))
        if t == 0:
            pre = [a_read(0, 0, 0), a_read(0, 0, 1)]
            for j in range(8):
                for ks in range(2):
                    for half in range(2):
                        pre.append(b_read(0, j, ks, half))
            pre += [a_read(0, 1, 0), a_read(0, 1, 1)]
            for s in pre:
                p.e(s)
            for i in range(2, 8):
                g = max(0, 16 * (i - 4) + 16)
                sc.place(a_read(0, i, 0), g, stream="a")
                sc.place(a_read(0, i, 1), g + 1, stream="a")
            Y = 20
            for s in barrier(sc, ["LB1"]):
                sc.place(s, Y, stream="bar", force=True)
            g = Y + 1
            for j in range(8):
                for ks in range(2):
                    for half in range(2):
                        g = sc.place(b_read(1, j, ks, half), g, stream="b") + 2
            place_dma(sc, dma_W(S_W, LB[0], "LB0"), Y + 2, 3)
        else:
            for i in range(8):
                g = 0 if i == 0 else (2 if i == 1 else 16 * i - 16)
                sc.place(a_read(t, i, 0), g, stream="a")
                sc.place(a_read(t, i, 1), g + 1, stream="a")
            if t + 1 <= 15:
                g = 33
                for j in range(8):
                    for ks in range(2):
                        for half in range(2):
                            g = sc.place(b_read(t + 1, j, ks, half), g, stream="b") + 2.6
            items = []
            if t + 1 <= 15:
                items += dma_A((t + 1) % 2)
            if t + 2 <= 15:
                items += dma_W(S_W, LB[t % 2], f"LB{t % 2}")
            if t == 14:
                items += dma_W(S_WQ, QW[0], "QW0") + dma_X(QX[0], "QX0")
            if t == 15:
                items += dma_W(S_WQ, QW[1], "QW1") + dma_X(QX[1], "QX1")
            place_dma(sc, items, 3, 4)
            if t == 15:
                for n, (rdy, T0, T1, so, imm) in enumerate(pairs):
                    if rdy <= 4:
                        g = base + 16 * (rdy + 1) + 5
                        for s in pack_pair(T0, T1):
                            sc.place(s, g, stream="pk")
                place_stores(sc, 4, 90, 6)
        sc.emit(p, mf)
        for s in barrier(p, last_tags):
            p.e(s)

    kv_interval(0, ["LA1", "LB0"])
    kv_interval(1, ["LA0", "LB1"])
    p.e(f"s_mov_b32 s{S_CNT}, 6")
    p.begin()
    p.e(f".p2align 4\nL_kv_loop_{variant}:")
    kv_interval(2, ["LA1", "LB0"])
    kv_interval(3, ["LA0", "LB1"])
    p.e(f"s_sub_u32 s{S_CNT}, s{S_CNT}, 1\ns_cmp_lg_u32 s{S_CNT}, 0\ns_cbranch_scc1 L_kv_loop_{variant}")
    p.end_loop()
    kv_interval(14, ["LA1"])
    kv_interval(15, ["QW0", "QX0"])
    if opts.get("diag"):
        stamp(p, 2)

    qstore_so = [0]

    def q_interval(u):
        mf = []
        if u == 0:
            mf += kv_mfmas(variant, m, 15, 6, False) + kv_mfmas(variant, m, 15, 7, False)
        else:
            for db in range(12, 16):
                mf += q_mfmas(q, u - 1, db)
        base = len(mf)
        if u <= 6:
            for db in range(12):
                mf += q_mfmas(q, u, db)
        sc = Sched(len(mf))
        if u <= 6:
            for qb in range(2):
                for ks in range(2):
                    sc.place(qx_read(u, qb, ks), 0, stream="r")
            for db in range(16):
                lo = base + (db - 8) * 4 + 3 if db >= 8 else (base - 16 + (db - 4) * 4 + 3 if (db >= 4 and u > 0) else 0)
                g = max(lo, 2 + db * (len(mf) - 12) / 16.0)
                for ks in range(2):
                    for half in range(2):
                        sc.place(qw_read(u, db, ks, half), g, stream="r")
            items = []
            if u + 2 <= 6:
                items += dma_W(S_WQ, QW[(u + 2) % 3], f"QW{(u+2) % 3}") + dma_X(QX[(u + 2) % 3], f"QX{(u+2) % 3}")
            place_dma(sc, items, 3, 3)
        if u == 0:
            for n, (rdy, T0, T1, so, imm) in enumerate(pairs):
                if rdy >= 5:
                    g = max(0, 16 * (rdy - 5) + 5)
                    for s in pack_pair(T0, T1):
                        sc.place(s, g, stream="pk")
            place_stores(sc, 4, 50, 6)
        elif u <= 5:
            place_stores(sc, 5, 4, 10)
        if u >= 6:
            assert st_next[0] == len(stores)
            for ds in range(8):
                if u == 6 and ds <= 4:
                    g = base + (2 * ds + 2) * 4 + 5
                elif u == 7 and ds >= 5:
                    g = max(0, (2 * ds + 2 - 12) * 4 + 5)
                else:
                    continue
                for qb in range(2):
                    T0, T1 = q[(2*ds, qb)], q[(2*ds+1, qb)]
                    for s in pack_pair(T0, T1, S_SCALE):
                        sc.place(s, g, stream="pk")
                    sc.place(f"s_mov_b32 s{S_ST}, {qb*8192 + (ds >> 2)*4096}", g, stream="pk")
                    sc.place(f"buffer_store_dwordx4 {reg(T0)}, v{V_L16}, {sr(S_QO)}, s{S_ST} offen offset:{(ds & 3)*1024}{sc1}",
                             g, cost=2, stream="pk")
        sc.emit(p, mf)
        if u <= 5:
            for s in barrier(p, [f"QW{(u+1) % 3}", f"QX{(u+1) % 3}"]):
                p.e(s)

    for u in range(8):
        q_interval(u)


def setup(p, opts):
    e = p.e
    e("s_cmp_ge_u32 s2, 256\ns_cbranch_scc1 L_l1_end")
    e("s_load_dwordx4 s[72:75], s[0:1], 24")
    e("s_load_dwordx4 s[76:79], s[0:1], 40")
    e("s_load_dwordx2 s[80:81], s[0:1], 56")
    e("s_load_dwordx2 s[82:83], s[0:1], 88")
    if opts.get("diag"):
        e("s_memrealtime s[92:93]\ns_memtime s[94:95]")
    e(f"v_lshrrev_b32 v11, 6, v0\nv_and_b32 v0, 63, v0")
    e(f"v_readfirstlane_b32 s{S_WAVE}, v11")
    e(f"s_and_b32 s{S_H}, s2, 7\ns_lshl_b32 s{S_H}, s{S_H}, 1\ns_bfe_u32 s{S_T0}, s2, 0x10003\ns_add_u32 s{S_H}, s{S_H}, s{S_T0}")
    e(f"s_lshr_b32 s{S_G}, s2, 4")
    e(f"s_lshr_b32 s{S_T0}, s{S_WAVE}, 1\ns_lshl_b32 s{S_T0}, s{S_T0}, 2\ns_and_b32 s{S_T1}, s{S_WAVE}, 1\n"
      f"s_add_u32 s{S_T0}, s{S_T0}, s{S_T1}\ns_lshl_b32 s{S_T0}, s{S_T0}, 1")
    e(f"v_and_b32 v11, 48, v0\nv_bfe_u32 v12, v0, 3, 1\nv_add3_u32 v11, v11, v12, s{S_T0}")
    e(f"v_and_b32 v12, 7, v0\nv_lshlrev_b32 v12, 4, v12")
    e(f"v_lshl_add_u32 v{V_AD}, v11, 11, v12")
    e(f"v_mul_u32_u24 v{V_XD}, 896, v11\nv_add_u32 v{V_XD}, v{V_XD}, v12")
    e(f"s_lshr_b32 s{S_T0}, s{S_WAVE}, 1\ns_lshl_b32 s{S_T0}, s{S_T0}, 3\ns_lshl_b32 s{S_T1}, s{S_T1}, 1\ns_add_u32 s{S_T0}, s{S_T0}, s{S_T1}")
    e(f"v_lshrrev_b32 v11, 5, v0\nv_lshlrev_b32 v11, 2, v11\nv_add_u32 v11, s{S_T0}, v11")
    e(f"v_and_b32 v12, 31, v0\nv_lshlrev_b32 v12, 4, v12\nv_lshl_add_u32 v{V_BD}, v11, 13, v12")
    for ee in range(2):
        for g in range(4):
            e(f"s_mov_b32 s{S_SOA + 4*ee + g}, {2048*(64*g + 4*ee) - 1024*g}")
            e(f"s_mov_b32 s{S_SOB + 4*ee + g}, {8192*(16*g + ee) - 1024*g}")
    e(f"s_mul_i32 s{S_T0}, s{S_WAVE}, 8224")
    for s in range(2):
        for ee in range(2):
            e(f"s_add_u32 s{S_M0A + 2*s + ee}, s{S_T0}, {LA[s] + 4096*ee}")
    e(f"s_mul_i32 s{S_T0}, s{S_WAVE}, 8256")
    for s in range(2):
        for ee in range(2):
            e(f"s_add_u32 s{S_M0B + 2*s + ee}, s{S_T0}, {LB[s] + 4128*ee}")
    e(f"s_add_u32 s{S_MA1}, s{S_T0}, {LA[1]}")
    e(f"s_mul_i32 s{S_MX}, s{S_WAVE}, 4128")
    e("s_waitcnt lgkmcnt(0)")
    e(f"s_lshr_b32 s{S_T0}, s{S_G}, 1\ns_lshl_b32 s{S_T0}, s{S_T0}, 19")
    srd_from(p, S_C, 74, off_sgpr=S_T0, size=2048*1024*2)
    e(f"s_bitcmp1_b32 s{S_G}, 0\ns_cselect_b32 s78, s80, s78\ns_cselect_b32 s79, s81, s79")
    e(f"s_lshl_b32 s{S_T0}, s{S_H}, 9")
    srd_from(p, S_W, 78, off_sgpr=S_T0, size=1024*4096*2)
    for kind, t in dma_A(0) + dma_W(S_W, LB[0], "LB0") + dma_W(S_W, LB[1], "LB1") + dma_A(1):
        e(t)
    srd_from(p, S_WQ, 76, off_sgpr=S_T0, size=448*4096*2)
    e(f"s_mul_i32 s{S_T0}, s{S_G}, {128*896}")
    srd_from(p, S_X, 72, off_sgpr=S_T0, size=2048*448*2)
    for ee in range(2):
        for g in range(2):
            e(f"s_mov_b32 s{S_SOX + 2*ee + g}, {896*(64*g + 4*ee) - 2048*ee - 1024*g}")
    e(f"s_lshl_b32 s{S_T0}, s{S_H}, 20\ns_lshl_b32 s{S_T1}, s{S_G}, 16\ns_add_u32 s{S_T0}, s{S_T0}, s{S_T1}\n"
      f"s_lshl_b32 s{S_T1}, s{S_WAVE}, 14\ns_add_u32 s{S_T0}, s{S_T0}, s{S_T1}")
    srd_from(p, S_QO, 82, off_sgpr=S_T0, off_imm=WS_Q, size=16 << 20)
    e(f"s_mov_b32 s{S_SCALE}, {f32(math.log2(math.e)/16)}")
    e("v_bfe_u32 v11, v0, 3, 1\nv_lshlrev_b32 v11, 2, v11")
    e("v_bfe_u32 v12, v0, 1, 1\nv_lshl_or_b32 v11, v12, 1, v11")
    e("v_bfe_u32 v12, v0, 2, 1\nv_or_b32 v11, v11, v12")
    e("v_lshrrev_b32 v12, 1, v11\nv_lshlrev_b32 v12, 5, v12")
    e("v_and_b32 v13, 1, v0\nv_lshl_add_u32 v12, v13, 7, v12")
    e("v_lshrrev_b32 v13, 4, v0\nv_lshl_add_u32 v12, v13, 4, v12")
    e(f"s_lshr_b32 s{S_T0}, s{S_WAVE}, 1\ns_lshl_b32 s{S_T0}, s{S_T0}, 11")
    e(f"v_lshl_add_u32 v{V_AR}, v11, 12, v12\nv_add_u32 v{V_AR}, s{S_T0}, v{V_AR}")
    e(f"s_lshl_b32 s{S_T0}, s{S_WAVE}, 9")
    e(f"v_lshl_add_u32 v{V_XR}, v11, 11, v12\nv_add_u32 v{V_XR}, s{S_T0}, v{V_XR}")
    e(f"v_add_u32 v{V_XR_SP}, {LSP}, v{V_XR}")
    e("v_bfe_u32 v11, v0, 2, 3")
    e("v_mul_u32_u24 v11, 4128, v11")
    e("v_lshrrev_b32 v12, 5, v0\nv_lshl_add_u32 v11, v12, 10, v11")
    e("v_and_b32 v12, 3, v0\nv_lshl_add_u32 v11, v12, 3, v11")
    e(f"v_add_u32 v{V_WR_A1}, {LA[1]}, v11\nv_add_u32 v{V_WR_B}, {LB[0]}, v11")
    e(f"s_and_b32 s{S_T0}, s{S_WAVE}, 1\ns_lshl_b32 s{S_T0}, s{S_T0}, 8")
    e(f"v_add_u32 v{V_BR}, s{S_T0}, v{V_WR_B}")
    e(f"v_lshlrev_b32 v{V_L16}, 4, v0")
    if opts.get("diag"):
        e("v_writelane_b32 v11, s92, 0\nv_writelane_b32 v11, s94, 8")


def out_srd(p, variant):
    e = p.e
    e(f"s_lshr_b32 s{S_T1}, s{S_G}, 1")
    if variant == "K":
        e(f"s_lshl_b32 s{S_T0}, s{S_H}, 20\ns_lshl_b32 s{S_T1}, s{S_T1}, 17\ns_add_u32 s{S_T0}, s{S_T0}, s{S_T1}")
        e(f"s_lshr_b32 s{S_T1}, s{S_WAVE}, 1\ns_lshl_b32 s{S_T1}, s{S_T1}, 16\ns_add_u32 s{S_T0}, s{S_T0}, s{S_T1}")
        e(f"s_and_b32 s{S_T1}, s{S_WAVE}, 1\ns_lshl_b32 s{S_T1}, s{S_T1}, 12\ns_add_u32 s{S_T0}, s{S_T0}, s{S_T1}")
        srd_from(p, S_O, 82, off_sgpr=S_T0, off_imm=WS_K, size=16 << 20)
    else:
        e(f"s_lshl_b32 s{S_T0}, s{S_H}, 20\ns_lshl_b32 s{S_T1}, s{S_T1}, 17\ns_add_u32 s{S_T0}, s{S_T0}, s{S_T1}")
        e(f"s_lshr_b32 s{S_T1}, s{S_WAVE}, 1\ns_lshl_b32 s{S_T1}, s{S_T1}, 16\ns_add_u32 s{S_T0}, s{S_T0}, s{S_T1}")
        e(f"s_and_b32 s{S_T1}, s{S_WAVE}, 1\ns_lshl_b32 s{S_T1}, s{S_T1}, 14\ns_add_u32 s{S_T0}, s{S_T0}, s{S_T1}")
        srd_from(p, S_O, 82, off_sgpr=S_T0, off_imm=WS_V, size=16 << 20)


def gen_l1(opts):
    texts = []
    bodies = {}
    for variant in ("K", "V"):
        p = Prog()
        setup(p, opts)
        p.e(f"s_bitcmp1_b32 s{S_G}, 0\ns_cbranch_scc1 L_l1_V")
        p.e("L_split:")
        out_srd(p, variant)
        p.e("s_barrier @r:LA0,LB0")
        if opts.get("diag"):
            stamp(p, 1)
        gen_variant_full(p, variant, opts)
        if opts.get("diag"):
            stamp(p, 3)
            diag_store(p, 0, 82, S_WAVE, S_T0, S_T1)
        p.e("s_endpgm")
        txt = finalize(p)
        head, body = txt.split("L_split:\n")
        bodies[variant] = (head, body)
    assert bodies["K"][0] == bodies["V"][0]
    return bodies["K"][0] + bodies["K"][1] + "\nL_l1_V:\n" + bodies["V"][1] + "\nL_l1_end:\ns_endpgm"


if __name__ == "__main__":
    import sys
    opts = {"diag": True}
    body = gen_l1(opts)
    name = "l1_kernel"
    out = f"; @launch kernel={name} grid=(256,1,1) block=(256,1,1) lds={LDS_MAX}\n"
    out += '.amdgcn_target "amdgcn-amd-amdhsa--gfx950"\n.text\n' + kernel_text(name, body)
    out += '.section .rodata,"a"\n' + descriptor(name) + "\n"
    open("l1.s", "w").write(out)
```

```python
from common import *

S_K, S_V, S_Q, S_CTX, S_PART, S_FLAG = 4, 8, 12, 16, 20, 24
S_KO, S_KO2, S_VO, S_VO2, S_WRAP, S_WRAPV = 28, 29, 30, 31, 32, 33
S_M0 = 34
S_WAVE, S_H, S_G, S_P, S_T0, S_T1, S_CNT, S_CNT2, S_MODE, S_THR, S_QA, S_QB, S_ST, S_BIT = range(42, 56)
S_BITV = 66
S_CQ0, S_CQ1 = 56, 57
S_MSK = 58
V_KR, V_VR, V_DM, V_L16, V_Q0, V_Q1, V_NEGBIG = 1, 2, 3, 4, 5, 6, 7
V_L = 8
V_TS = 10
V_TMP = 13
V_NEGM = 16
V_E = 24
V_S = 32
V_P = 64
V_X = 96
V_O = 128
A_Q = [0, 64]
A_R = 128


def TS(qb):
    return 10 + 2 * qb


def S(kb, qb):
    return V_S + (kb * 2 + qb) * 4


def P(par, ks, qb):
    return V_P + par * 16 + (ks * 2 + qb) * 4


def O(db, qb):
    return V_O + (db * 2 + qb) * 4


def ring(n):
    return A_R + 4 * (n % 16)


def k_read(par, n):
    return f"ds_read_b128 {ar(ring(n))}, v{V_KR} offset:{par*32768 + n*1024}"


def v_read(par, m):
    return f"ds_read_b128 {ar(ring(m))}, v{V_VR} offset:{par*32768 + m*1024}"


def dma_tile(which, par):
    srd, so, so2, m0 = (S_K, S_KO, S_KO2, S_M0) if which == "K" else (S_V, S_VO, S_VO2, S_M0 + 4)
    out = []
    for e in range(2):
        out.append(("m0", f"s_mov_b32 m0, s{m0 + 2*par + e}"))
        for i in range(4):
            out.append(("dma", f"buffer_load_dwordx4 v{V_DM}, {sr(srd)}, s{so2 if e else so} offen offset:{i*1024} lds @w:{which}{par}"))
    out.append(("salu", f"s_add_u32 s{so}, s{so}, 32768"))
    out.append(("salu2", f"s_cmp_eq_u32 s{so}, s{S_WRAP if which == 'K' else S_WRAPV}\ns_cselect_b32 s{so}, 0, s{so}"))
    out.append(("salu", f"s_add_u32 s{so2}, s{so}, 4096"))
    return out


def place_dma(sc, items, start, step):
    g = start
    for kind, t in items:
        if kind == "dma":
            gg = sc.place(t, g, cost=DMA_COST, stream="dma")
            g = gg + step
        elif kind == "m0":
            gg = sc.place(t, max(g - 1, sc.last.get("dma", -1) + 1), stream="dma")
            g = max(g, gg + 1)
        else:
            sc.place(t, sc.last.get("dma", 0) + 1, cost=2 if kind == "salu2" else 1, stream="dma")
    return g


DMA_COST = 2


def qk_mfmas(qset, first, qbs):
    out = []
    for kb in range(4):
        for qb in qbs:
            for ds in range(8):
                d = vr(S(kb, qb))
                c = d if ds else ("0" if first else vr(V_NEGM + 4 * qb))
                out.append(mfma16(d, ar(ring(8 * kb + ds)), ar(A_Q[qset] + (qb * 8 + ds) * 4), c))
    return out


def pv_mfmas(par, first, qbs):
    out = []
    for db in range(16):
        for qb in qbs:
            for ks in range(2):
                d = vr(O(db, qb))
                c = "0" if (first and ks == 0) else d
                out.append(mfma16(d, ar(ring(2 * db + ks)), vr(P(par, ks, qb)), c))
    return out


def mask_ops(kb, qb, vq):
    out = []
    for r in range(4):
        out.append(f"v_cmp_le_i32 s[{S_MSK+2*r}:{S_MSK+2*r+1}], {16*kb + r}, v{vq}")
    for r in range(4):
        out.append(f"v_cndmask_b32 v{S(kb,qb)+r}, v{V_NEGBIG}, v{S(kb,qb)+r}, s[{S_MSK+2*r}:{S_MSK+2*r+1}]")
    return out


ecnt = [0]


def exp_ops(par, kb, qb, firstsum, sub=None):
    out = []
    base = V_E + 4 * (ecnt[0] % 2)
    ecnt[0] += 1
    s = S(kb, qb)
    ts = TS(qb)
    for r in range(4):
        if sub is not None:
            out.append((f"v_add_f32 v{base+r}, v{s+r}, v{sub}", 1))
            out.append((f"v_exp_f32 v{base+r}, v{base+r}", 2))
        else:
            out.append((f"v_exp_f32 v{base+r}, v{s+r}", 2))
    pd = P(par, kb >> 1, qb) + 2 * (kb & 1)
    if firstsum:
        out.append((f"v_add_f32 v{ts}, v{base}, v{base+1}", 1))
    else:
        out.append((f"v_add_f32 v{ts}, v{ts}, v{base}", 1))
        out.append((f"v_add_f32 v{ts}, v{ts}, v{base+1}", 1))
    out.append((f"v_cvt_pk_bf16_f32 v{pd}, v{base}, v{base+1}", 1))
    out.append((f"v_add_f32 v{ts}, v{ts}, v{base+2}", 1))
    out.append((f"v_add_f32 v{ts}, v{ts}, v{base+3}", 1))
    out.append((f"v_cvt_pk_bf16_f32 v{pd+1}, v{base+2}, v{base+3}", 1))
    return out


def xlane(op, r, t):
    return [f"v_mov_b32 v{t}, v{r}",
            f"v_permlane16_swap_b32 v{r}, v{t}",
            f"{op} v{r}, v{r}, v{t}",
            f"v_mov_b32 v{t}, v{r}",
            f"v_permlane32_swap_b32 v{r}, v{t}",
            f"{op} v{r}, v{r}, v{t}"]


def max_ops(kb, qb, first):
    m = V_X + qb
    s = S(kb, qb)
    if first:
        return [f"v_max3_f32 v{m}, v{s}, v{s+1}, v{s+2}", f"v_max_f32 v{m}, v{m}, v{s+3}"]
    return [f"v_max3_f32 v{m}, v{m}, v{s}, v{s+1}", f"v_max3_f32 v{m}, v{m}, v{s+2}, v{s+3}"]


rare_id = [0]


def check_and_rare(p, par, qbs):
    rid = rare_id[0]
    rare_id[0] += 1
    p.e(f"s_cbranch_vccnz L_rare{rid}")
    p.begin()
    p.e(f"L_rare{rid}:")
    for qb in qbs:
        for kb in range(4):
            for s in max_ops(kb, qb, kb == 0):
                p.e(s)
        m = V_X + qb
        for s in xlane("v_max_f32", m, V_TMP):
            p.e(s)
        p.e(f"v_max_f32 v{m}, 0, v{m}")
        p.e(f"v_sub_f32 v{m}, 0, v{m}")
        p.e(f"v_exp_f32 v{V_TMP}, v{m}")
        for r in range(4):
            p.e(f"v_add_f32 v{V_NEGM+4*qb+r}, v{V_NEGM+4*qb+r}, v{m}")
        p.e(f"v_mul_f32 v{V_L+qb}, v{V_L+qb}, v{V_TMP}")
        for db in range(16):
            for r in range(4):
                p.e(f"v_mul_f32 v{O(db,qb)+r}, v{O(db,qb)+r}, v{V_TMP}")
        for kb in range(4):
            for s, c in exp_ops(par, kb, qb, kb == 0, sub=m):
                p.e(s)
    p.e(f"s_branch L_ret{rid}")
    p.end_alt()
    p.e(f"L_ret{rid}:")
    for qb in qbs:
        p.e(f"v_add_f32 v{V_L+qb}, v{V_L+qb}, v{TS(qb)}")


def pack_o(ds, qb, dst=None):
    b0, b1 = O(2*ds, qb), O(2*ds+1, qb)
    d = b0 if dst is None else dst
    return [f"v_cvt_pk_bf16_f32 v{d}, v{b0}, v{b0+1}",
            f"v_cvt_pk_bf16_f32 v{d+1}, v{b0+2}, v{b0+3}",
            f"v_cvt_pk_bf16_f32 v{d+2}, v{b1}, v{b1+1}",
            f"v_cvt_pk_bf16_f32 v{d+3}, v{b1+2}, v{b1+3}"]


def q_loads(qset, s_q):
    out = []
    for qb in range(2):
        for half in range(2):
            t = S_T0 if half == 0 else S_T1
            if qb == 0:
                out.append(("salu", f"s_lshl_b32 s{t}, s{S_WAVE}, 13"))
            else:
                out.append(("salu", f"s_sub_u32 s{t}, 7, s{S_WAVE}"))
                out.append(("salu", f"s_lshl_b32 s{t}, s{t}, 13"))
            out.append(("salu", f"s_add_u32 s{t}, s{t}, s{s_q}"))
            if half:
                out.append(("salu", f"s_add_u32 s{t}, s{t}, 4096"))
            for i in range(4):
                ds = 4 * half + i
                out.append(("ld", f"buffer_load_dwordx4 {ar(A_Q[qset] + (qb*8 + ds)*4)}, v{V_L16}, {sr(S_Q)}, s{t} offen offset:{i*1024}"))
    return out


def add_dma(sc, items, lo, hi, dep=None):
    nd = sum(1 for k, t in items if k == "dma")
    k = 0
    prev = dep
    for kind, t in items:
        dl = lo + (hi - lo) * k / nd
        if kind == "dma":
            prev = sc.add(t, dl, dl - 30, DMA_COST, [(prev, 1)] if prev else [])
            k += 1
        elif kind == "m0":
            prev = sc.add(t, dl - 3, dl - 31, 1, [(prev, 0)] if prev else [])
        else:
            prev = sc.add(t, lo, hi + 8, 2 if kind == "salu2" else 1, [(prev, 0)])
    return prev


def add_exp(sc, par, kb, qb, lo, dl, state, sub=None):
    base = V_E + 4 * (ecnt[0] % 2)
    free = state.get(("e", ecnt[0] % 2), [])
    ecnt[0] += 1
    s = S(kb, qb)
    ts = TS(qb)
    pd = P(par, kb >> 1, qb) + 2 * (kb & 1)
    pre = state.get("pre")
    ex = []
    for r in range(4):
        deps = list(free) + ([pre] if pre else []) + ([ex[-1]] if ex else [])
        if sub is not None:
            a = sc.add(f"v_add_f32 v{base+r}, v{s+r}, v{sub}", lo, dl, 1, deps)
            ex.append(sc.add(f"v_exp_f32 v{base+r}, v{base+r}", lo, dl, 2, [a]))
        else:
            ex.append(sc.add(f"v_exp_f32 v{base+r}, v{s+r}", lo, dl, 2, deps))
    prev = state.get(("ts", qb))
    if prev is None:
        prev = sc.add(f"v_add_f32 v{ts}, v{base}, v{base+1}", lo, dl + 1, 1, [(ex[1], 1)] + state.get("tsfree", []))
    else:
        prev = sc.add(f"v_add_f32 v{ts}, v{ts}, v{base}", lo, dl + 1, 1, [(ex[0], 1), prev])
        prev = sc.add(f"v_add_f32 v{ts}, v{ts}, v{base+1}", lo, dl + 1, 1, [(ex[1], 1), prev])
    c0 = sc.add(f"v_cvt_pk_bf16_f32 v{pd}, v{base}, v{base+1}", lo, dl + 1, 1, [(ex[1], 1)])
    prev = sc.add(f"v_add_f32 v{ts}, v{ts}, v{base+2}", lo, dl + 2, 1, [(ex[2], 1), prev])
    prev = sc.add(f"v_add_f32 v{ts}, v{ts}, v{base+3}", lo, dl + 2, 1, [(ex[3], 1), prev])
    c1 = sc.add(f"v_cvt_pk_bf16_f32 v{pd+1}, v{base+2}, v{base+3}", lo, dl + 2, 1, [(ex[3], 1)])
    state[("ts", qb)] = prev
    state[("e", (ecnt[0] - 1) % 2)] = [prev, c0, c1]
    state["last"] = [prev, c0, c1]


def waitpoint(frs):
    return "@wait " + " ".join(ar(ring(x)) for x in frs)


def step(p, par, pv, qk, opts, qset=0, dmaK=True, dmaV=True, nxt="K", partial=False, reloadQ=False,
         publish=False, dmaVnext=False, cap=2):
    kpar = 1 - par
    qq = [1] if qk == "D1" else [0, 1]
    pq = [1] if pv == "half" else [0, 1]
    nq = 0 if qk is None else 32 * len(qq)
    mf = []
    if qk is not None:
        mf += qk_mfmas(qset, qk in ("first", "firstD0"), qq)
    mf += pv_mfmas(par, pv == "first", pq)
    n = len(mf)
    kstep = 8 * len(qq)
    vstep = 2 * len(pq)
    sc = LSched(n, cap)
    firstsm = qk in ("first", "firstD0")
    B1 = (48 if nq == 64 else 22) if nq else None
    B2 = n - 16
    if nq:
        sc.fix("s_waitcnt lgkmcnt(0)", B1 - 1)
        sc.fix(f"s_barrier @r:V{par}", B1 - 1)
    if nxt or publish:
        tags = ([f"K{par}"] if nxt == "K" else []) + ([f"V{kpar}"] if nxt == "V" else []) + (["PST"] if publish else [])
        sc.fix("s_waitcnt lgkmcnt(0)", B2 - 1)
        sc.fix("s_barrier @r:" + ",".join(tags), B2 - 1)
    prev = None
    kr, vrd = {}, {}
    if nq:
        for nn in range(8, 32):
            lo = 0 if nn < 16 else kstep * ((nn - 16) >> 3) + (kstep - 8) + ((nn & 7) | 1)
            if nn < 16 and nq == 64:
                lo = (nn - 8) & 6
            use = kstep * (nn >> 3)
            dl = min(use - 9 - (7 - (nn & 7)) * 0.5, B1 - 10)
            prev = kr[nn] = sc.add(k_read(kpar, nn), lo, dl - 100, 1, [prev])
        if nq == 64:
            sc.fix(waitpoint(range(8, 16)), 15)
            sc.fix(waitpoint(range(16, 24)), 31)
    for m in range(32):
        if nq:
            if m < 16:
                lo = max(B1 + (m & 6), kstep * (2 + (m >> 3)) + (kstep - 8) + ((m & 7) | 1))
            else:
                lo = nq + vstep * ((m - 16) >> 1) + (vstep - 2) + 1
        else:
            if m < 8:
                continue
            lo = 0 if m < 16 else vstep * ((m - 16) >> 1) + (vstep - 2) + (m & 1)
        prev = vrd[m] = sc.add(v_read(par, m), lo, lo - 100, 1, [prev])
    if nq and vstep == 4:
        for k in range(3):
            sc.fix(waitpoint(range(8 * k, 8 * k + 8)), nq + 16 * k - 1)
    if nxt:
        for nn in range(8):
            prev = sc.add(k_read(par, nn) if nxt == "K" else v_read(kpar, nn), B2 + (nn & 6), B2 - 100, 1, [prev])
        sc.fix(waitpoint(range(0, 8)), n - 1)
    d = None
    if dmaV:
        d = add_dma(sc, dma_tile("V", kpar), 1, 40)
    if dmaK:
        d = add_dma(sc, dma_tile("K", kpar), B1 + 2, B1 + 50, d)
    if dmaVnext:
        d = add_dma(sc, dma_tile("V", par), B2 + 1, B2 + 10, d)
    pst = {}
    if partial:
        prevp = None
        for ds in range(8):
            for qb in range(2):
                dl = -50 + ds * 4
                c = sc.chain(pack_o(ds, qb), 2, dl)
                a = sc.add(f"s_mov_b32 s{S_ST}, {qb*8192 + (ds >> 2)*4096}", 0, dl, 1, [prevp])
                prevp = pst[(ds, qb)] = sc.add(
                    f"buffer_store_dwordx4 {vr(O(2*ds, qb))}, v{V_L16}, {sr(S_PART)}, s{S_ST} offen offset:{(ds & 3)*1024} sc1 @w:PST",
                    0, dl, 2, [a, c[-1]])
        a = sc.add(f"s_mov_b32 s{S_ST}, 16384", 0, 0, 1, [prevp])
        sc.add(f"buffer_store_dwordx4 {vr(V_X+8)}, v{V_L16}, {sr(S_PART)}, s{S_ST} offen sc1 @w:PST", 0, 0, 2, [a])
    if reloadQ:
        sc.chain([(t, 2 if kind == "ld" else 1) for kind, t in q_loads(0, S_QB)], nq + 2, nq, n)
    if nq:
        LAT = 5
        st = {}
        if firstsm:
            prevm = None
            for kb in range(4):
                for qi, qb in enumerate(qq):
                    g = kstep * kb + 8 * qi + 7 + LAT
                    ops = []
                    if qk == "firstD0" and qb == 0:
                        ops += mask_ops(kb, 0, V_Q0)
                    ops += max_ops(kb, qb, kb == 0)
                    prevm = sc.chain(ops, g, g, dep=prevm)[-1]
            ops = []
            for qb in qq:
                ops += [f"v_mov_b32 v{V_X+8+2*qb}, v{V_NEGM+4*qb}", f"v_mov_b32 v{V_X+9+2*qb}, v{V_L+qb}"]
            for qb in qq:
                ops += xlane("v_max_f32", V_X + qb, V_TMP)
                ops += [f"v_sub_f32 v{V_NEGM+4*qb+r}, 0, v{V_X+qb}" for r in range(4)]
            st["pre"] = sc.chain(ops, 0, 0, dep=prevm)[-1]
            for kb in range(4):
                for qb in qq:
                    add_exp(sc, kpar, kb, qb, 0, nq + 8 * kb + 4 * qb, st, sub=V_NEGM + 4 * qb)
            for qb in qq:
                sc.add(f"v_mov_b32 v{V_L+qb}, v{TS(qb)}", 0, n, 1, [st[("ts", qb)]])
        else:
            prevm = None
            cnt = 0
            tot = 4 * len(qq)
            for kb in range(4):
                for qi, qb in enumerate(qq):
                    g = kstep * kb + 8 * qi + 7 + LAT
                    dl = 12 + (n - 24) * cnt / tot
                    cnt += 1
                    if (qk == "D0" and qb == 0) or qk == "D1":
                        prevm = st["pre"] = sc.chain(mask_ops(kb, qb, V_Q0 + qb), g, dl - 1, dep=prevm)[-1]
                    add_exp(sc, kpar, kb, qb, g, dl, st)
            if len(qq) == 2:
                a = sc.add(f"v_max_f32 v{V_TMP}, v{TS(0)}, v{TS(1)}", 0, n, 1, [st[("ts", 0)], st[("ts", 1)]])
                sc.add(f"v_cmp_nge_f32 vcc, s{S_THR}, v{V_TMP}", 0, n, 1, [a])
            else:
                sc.add(f"v_cmp_nge_f32 vcc, s{S_THR}, v{TS(1)}", 0, n, 1, [st[("ts", 1)]])
    sc.emit(p, mf)
    if nq:
        assert kr[31].gap <= B1 - 4, kr[31].gap
    if nxt:
        assert vrd[31].gap <= B2 - 4, vrd[31].gap
    for (ds, qb), it in pst.items():
        assert it.gap < nq + vstep * (2 * ds) + 2 * qb, ("partial store too late", ds, qb, it.gap)
    if opts.get("verbose"):
        print(f"step par={par} pv={pv} qk={qk}: n={n} overflow={sc.overflow} wasted={sc.wasted}")
    if publish:
        publish_flag(p)
    if nq and not firstsm:
        check_and_rare(p, kpar, qq)


pub_id = [0]


def publish_flag(p):
    i = pub_id[0]
    pub_id[0] += 1
    p.e(f"s_bitcmp1_b32 s{S_MODE}, 3\ns_cbranch_scc0 L_nopub{i}")
    p.e(f"s_cmp_eq_u32 s{S_WAVE}, 0\ns_cbranch_scc0 L_nopub{i}")
    p.begin()
    p.e(f"s_mov_b64 exec, 1")
    p.e(f"v_mov_b32 v{V_TMP+1}, s{S_BITV}\nv_mov_b32 v{V_TMP+2}, s{S_BIT}")
    p.e(f"buffer_atomic_or v{V_TMP+1}, v{V_TMP+2}, {sr(S_FLAG)}, 0 offen sc1")
    p.e(f"s_mov_b64 exec, -1")
    p.end_opt("pub")
    p.e(f"L_nopub{i}:")


def start_block(p, opts):
    p.e("s_barrier @r:K0")
    if opts.get("diag"):
        stamp(p, 1)
    for nn in range(16):
        p.e(k_read(0, nn))
    mf = qk_mfmas(0, True, [0, 1])
    sc = Sched(64)
    for nn in range(16, 32):
        sc.place(k_read(0, nn), 16 * ((nn - 16) >> 3) + 8 + (nn & 7), stream="r")
    place_dma(sc, dma_tile("V", 0), 1, 4)
    sc.place("s_waitcnt lgkmcnt(0)", 47, stream="b1", force=True)
    sc.place("s_barrier @r:K1", 47, stream="b1", force=True)
    place_dma(sc, dma_tile("K", 0), 49, 1)
    for nn in range(8):
        sc.place(k_read(1, nn), 40 + nn + 8, stream="r")
    for kb in range(4):
        for qb in range(2):
            for s in max_ops(kb, qb, kb == 0):
                sc.place(s, 16 * kb + 8 * qb + 12, stream="sm")
    sc.emit(p, mf)
    p.e(f"s_bitcmp1_b32 s{S_MODE}, 0\ns_cbranch_scc0 L_noq2")
    p.begin()
    for kind, t in q_loads(1, S_QB):
        p.e(t)
    p.end_opt("q2")
    p.e("L_noq2:")
    for qb in range(2):
        for s in xlane("v_max_f32", V_X + qb, V_TMP + qb):
            p.e(s)
    for qb in range(2):
        for r in range(4):
            p.e(f"v_sub_f32 v{V_NEGM+4*qb+r}, 0, v{V_X+qb}")
    for kb in range(4):
        for qb in range(2):
            for s, c in exp_ops(0, kb, qb, kb == 0, sub=V_NEGM + 4 * qb):
                p.e(s)
    for qb in range(2):
        p.e(f"v_mov_b32 v{V_L+qb}, v{TS(qb)}")


def end_common(p, opts):
    e = p.e
    e(f"s_bitcmp1_b32 s{S_MODE}, 2\ns_cbranch_scc0 L_nocomb1")
    p.begin()
    e(f"v_mov_b32 v{V_TMP+1}, s{S_BIT}\ns_mov_b32 s{S_T1}, 0x40000")
    e("L_poll:")
    e(f"buffer_load_dword v{V_TMP}, v{V_TMP+1}, {sr(S_FLAG)}, 0 offen sc1")
    e(f"s_waitcnt vmcnt(0)\nv_readfirstlane_b32 s{S_T0}, v{V_TMP}")
    e(f"s_and_b32 s{S_T0}, s{S_T0}, s{S_BITV}\ns_cbranch_scc1 L_polled\ns_sleep 2")
    e(f"s_sub_u32 s{S_T1}, s{S_T1}, 1\ns_cmp_lg_u32 s{S_T1}, 0\ns_cbranch_scc1 L_poll\nL_polled:")
    e(f"s_mov_b32 s{S_ST}, 16384")
    e(f"buffer_load_dwordx4 {vr(V_X+8)}, v{V_L16}, {sr(S_PART)}, s{S_ST} offen sc1")
    for qb in range(2):
        for ds in range(8):
            if ds % 4 == 0:
                e(f"s_mov_b32 s{S_ST}, {qb*8192 + (ds >> 2)*4096}")
            e(f"buffer_load_dwordx4 {ar(A_Q[0] + (qb*8+ds)*4)}, v{V_L16}, {sr(S_PART)}, s{S_ST} offen offset:{(ds & 3)*1024} sc1")
    p.end_opt("comb")
    e("L_nocomb1:")
    step(p, 1, "half", None, opts, dmaK=False, dmaV=False, nxt=None)
    e(f"s_bitcmp1_b32 s{S_MODE}, 2\ns_cbranch_scc1 L_comb2")


def ctx_store(e, ds, qb, src, opts):
    sc1 = " sc1" if opts.get("sc1") else ""
    if ds % 4 == 0:
        e(f"s_add_u32 s{S_ST}, s{S_CQ0+qb}, {(ds >> 2)*4096}")
    e(f"buffer_store_dwordx4 {vr(src)}, v{V_L16}, {sr(S_CTX)}, s{S_ST} offen offset:{(ds & 3)*1024}{sc1}")


def end_plain(p, opts):
    e = p.e
    for qb in range(2):
        for s in xlane("v_add_f32", V_L + qb, V_TMP + qb):
            e(s)
        e(f"v_rcp_f32 v{V_L+qb}, v{V_L+qb}")
    for qb in range(2):
        for ds in range(8):
            for t in (O(2*ds, qb), O(2*ds+1, qb)):
                for r in range(4):
                    e(f"v_mul_f32 v{t+r}, v{t+r}, v{V_L+qb}")
            for s in pack_o(ds, qb):
                e(s)
            ctx_store(e, ds, qb, O(2*ds, qb), opts)
    e("s_branch L_l2_done")


def end_comb(p, opts):
    e = p.e
    e("L_comb2:")
    for qb in range(2):
        na, nb, lb = V_NEGM + 4 * qb, V_X + 8 + 2 * qb, V_X + 9 + 2 * qb
        wa, wb = V_X + 12 + 2 * qb, V_X + 13 + 2 * qb
        e(f"v_min_f32 v{V_TMP}, v{na}, v{nb}")
        e(f"v_sub_f32 v{wa}, v{V_TMP}, v{na}")
        e(f"v_sub_f32 v{wb}, v{V_TMP}, v{nb}")
        e(f"v_exp_f32 v{wa}, v{wa}\nv_exp_f32 v{wb}, v{wb}")
        e(f"v_mul_f32 v{V_L+qb}, v{V_L+qb}, v{wa}")
        e(f"v_fmac_f32 v{V_L+qb}, v{lb}, v{wb}")
        for s in xlane("v_add_f32", V_L + qb, V_TMP):
            e(s)
        e(f"v_rcp_f32 v{V_L+qb}, v{V_L+qb}")
        e(f"v_mul_f32 v{wa}, v{wa}, v{V_L+qb}\nv_mul_f32 v{wb}, v{wb}, v{V_L+qb}")
    for qb in range(2):
        wa, wb = V_X + 12 + 2 * qb, V_X + 13 + 2 * qb
        for ds in range(8):
            for k in range(4):
                e(f"v_accvgpr_read_b32 v{V_E+k}, a{A_Q[0] + (qb*8+ds)*4 + k}")
            regs = [O(2*ds, qb) + r for r in range(4)] + [O(2*ds+1, qb) + r for r in range(4)]
            for r in regs:
                e(f"v_mul_f32 v{r}, v{r}, v{wa}")
            for k in range(4):
                e(f"v_lshlrev_b32 v{V_E+4}, 16, v{V_E+k}\nv_and_b32 v{V_E+5}, 0xffff0000, v{V_E+k}")
                e(f"v_fmac_f32 v{regs[2*k]}, v{V_E+4}, v{wb}\nv_fmac_f32 v{regs[2*k+1]}, v{V_E+5}, v{wb}")
            for s in pack_o(ds, qb):
                e(s)
            ctx_store(e, ds, qb, O(2*ds, qb), opts)


def setup(p, opts):
    e = p.e
    e("s_cmp_ge_u32 s2, 256\ns_cbranch_scc1 L_l2_end")
    e("s_load_dwordx4 s[80:83], s[0:1], 80")
    if opts.get("diag"):
        e("s_memrealtime s[92:93]\ns_memtime s[94:95]")
    e(f"v_lshrrev_b32 v12, 6, v0\nv_and_b32 v0, 63, v0")
    e(f"v_readfirstlane_b32 s{S_WAVE}, v12")
    e(f"s_and_b32 s{S_H}, s2, 7\ns_lshl_b32 s{S_H}, s{S_H}, 1\ns_bfe_u32 s{S_T0}, s2, 0x10003\ns_add_u32 s{S_H}, s{S_H}, s{S_T0}")
    e(f"s_lshr_b32 s{S_G}, s2, 4\ns_lshr_b32 s{S_P}, s{S_G}, 1")
    e(f"v_lshlrev_b32 v{V_L16}, 4, v0\nv_mov_b32 v{V_KR}, v{V_L16}\nv_add_u32 v{V_VR}, 0x10000, v{V_L16}")
    e(f"s_lshl_b32 s{S_T0}, s{S_WAVE}, 13\nv_add_u32 v{V_DM}, s{S_T0}, v{V_L16}")
    for k in range(8):
        e(f"s_add_u32 s{S_M0+k}, s{S_T0}, {(k >> 1)*32768 + (k & 1)*4096}")
    e(f"s_lshl_b32 s{S_T1}, s{S_P}, 1\ns_sub_u32 s{S_T1}, 14, s{S_T1}")
    e(f"s_sub_u32 s{S_QA}, 15, s{S_P}\ns_mov_b32 s{S_QB}, s{S_P}")
    e(f"s_bitcmp1_b32 s{S_G}, 0\ns_cbranch_scc0 L_role_b")
    e(f"s_lshl_b32 s{S_KO}, s{S_T1}, 15\ns_mov_b32 s{S_WRAP}, -1\ns_mov_b32 s{S_CNT}, 7\ns_mov_b32 s{S_CNT2}, 0")
    e(f"s_cmp_lg_u32 s{S_T1}, 0\ns_cselect_b32 s{S_MODE}, 4, 0\ns_mov_b32 s{S_QB}, s{S_QA}")
    e("s_branch L_role_done\nL_role_b:")
    e(f"s_mov_b32 s{S_KO}, 0\ns_lshl_b32 s{S_WRAP}, s{S_T1}, 15\ns_sub_u32 s{S_CNT}, 6, s{S_P}\ns_sub_u32 s{S_CNT2}, s{S_P}, 1")
    e(f"s_cmp_eq_u32 s{S_P}, 0\ns_cselect_b32 s{S_MODE}, 11, 9")
    e(f"s_cmp_eq_u32 s{S_T1}, 0\ns_cselect_b32 s{S_WRAP}, -1, s{S_WRAP}\ns_cselect_b32 s{S_CNT}, 6, s{S_CNT}\n"
      f"s_cselect_b32 s{S_MODE}, 0, s{S_MODE}\ns_cselect_b32 s{S_QA}, s{S_P}, s{S_QA}")
    e("L_role_done:")
    e(f"s_mov_b32 s{S_WRAPV}, s{S_WRAP}")
    e(f"s_add_u32 s{S_KO2}, s{S_KO}, 4096\ns_mov_b32 s{S_VO}, s{S_KO}\ns_mov_b32 s{S_VO2}, s{S_KO2}")
    e(f"s_lshl_b32 s{S_T0}, s{S_QB}, 3\ns_add_u32 s{S_CQ0}, s{S_T0}, s{S_WAVE}\ns_add_u32 s{S_CQ1}, s{S_T0}, 7\ns_sub_u32 s{S_CQ1}, s{S_CQ1}, s{S_WAVE}")
    e(f"s_lshl_b32 s{S_CQ0}, s{S_CQ0}, 17\ns_lshl_b32 s{S_CQ1}, s{S_CQ1}, 17\ns_lshl_b32 s{S_T0}, s{S_H}, 13")
    e(f"s_add_u32 s{S_CQ0}, s{S_CQ0}, s{S_T0}\ns_add_u32 s{S_CQ1}, s{S_CQ1}, s{S_T0}")
    e(f"s_lshl_b32 s{S_QA}, s{S_QA}, 16\ns_lshl_b32 s{S_QB}, s{S_QB}, 16")
    e("s_waitcnt lgkmcnt(0)")
    e(f"s_lshl_b32 s{S_T0}, s{S_H}, 20")
    for srd, off in ((S_Q, WS_Q), (S_K, WS_K), (S_V, WS_V)):
        e(f"s_add_u32 s{srd}, s82, s{S_T0}\ns_addc_u32 s{srd+1}, s83, 0")
        if off:
            e(f"s_add_u32 s{srd}, s{srd}, {off}\ns_addc_u32 s{srd+1}, s{srd+1}, 0")
        e(f"s_mov_b32 s{srd+2}, 0x100000\ns_mov_b32 s{srd+3}, 0x20000")
    for kind, t in dma_tile("K", 0) + q_loads(0, S_QA) + dma_tile("K", 1):
        e(t)
    e(f"s_cmp_eq_u32 s{S_KO}, 0\ns_cselect_b32 s{S_WRAP}, -1, s{S_WRAP}")
    srd_from(p, S_CTX, 82, off_imm=WS_CTX, size=16 << 20)
    e(f"s_lshl_b32 s{S_T0}, s{S_H}, 3\ns_add_u32 s{S_T0}, s{S_T0}, s{S_P}")
    e(f"s_lshr_b32 s{S_BIT}, s{S_T0}, 1\ns_lshl_b32 s{S_BIT}, s{S_BIT}, 2\ns_and_b32 s{S_BITV}, s{S_P}, 1\ns_lshl_b32 s{S_BITV}, 1, s{S_BITV}")
    e(f"s_lshl_b32 s{S_T0}, s{S_T0}, 17\ns_lshl_b32 s{S_T1}, s{S_WAVE}, 15\ns_add_u32 s{S_T0}, s{S_T0}, s{S_T1}")
    e(f"s_add_u32 s{S_PART}, s82, s{S_T0}\ns_addc_u32 s{S_PART+1}, s83, 0\ns_add_u32 s{S_PART}, s{S_PART}, {WS_PART}\n"
      f"s_addc_u32 s{S_PART+1}, s{S_PART+1}, 0\ns_mov_b32 s{S_PART+2}, 32768\ns_mov_b32 s{S_PART+3}, 0x20000")
    srd_from(p, S_FLAG, 80, size=256)
    e(f"s_mov_b32 s{S_THR}, {f32(opts.get('thr', 2.0**30))}")
    e(f"v_mov_b32 v{V_NEGBIG}, {f32(-1e30)}")
    e(f"v_and_b32 v12, 15, v0\nv_lshrrev_b32 v13, 4, v0\nv_lshlrev_b32 v13, 2, v13\nv_sub_u32 v12, v12, v13")
    e(f"s_lshl_b32 s{S_T0}, s{S_WAVE}, 4\nv_add_u32 v{V_Q0}, s{S_T0}, v12\ns_sub_u32 s{S_T0}, 48, s{S_T0}\nv_add_u32 v{V_Q1}, s{S_T0}, v12")
    if opts.get("diag"):
        e("v_writelane_b32 v11, s92, 0\nv_writelane_b32 v11, s94, 8")


def gen_l2(opts):
    B = {}
    def blk(name):
        B[name] = Prog()
        return B[name]
    p = blk("head")
    setup(p, opts)
    start_block(p, opts)
    if opts.get("diag"):
        stamp(p, 2)
    step(p, 0, "first", "full", opts)
    p = blk("lentry")
    p.e(f"L_lentry:\ns_cmp_eq_u32 s{S_CNT}, 0\ns_cbranch_scc1 L_lexit")
    p = blk("loop")
    p.begin()
    p.e(".p2align 4\nL_loop:")
    step(p, 1, "full", "full", opts)
    step(p, 0, "full", "full", opts)
    p.e(f"s_sub_u32 s{S_CNT}, s{S_CNT}, 1\ns_cmp_lg_u32 s{S_CNT}, 0\ns_cbranch_scc1 L_loop")
    p.end_loop(2)
    p = blk("lexit")
    p.e(f"L_lexit:\ns_bitcmp1_b32 s{S_MODE}, 0\ns_cbranch_scc1 L_trans")
    if opts.get("diag"):
        stamp(p, 3)
    p = blk("pred")
    step(p, 1, "full", "D0", opts, dmaK=False, publish=True, dmaVnext=True)
    step(p, 0, "full", "D1", opts, dmaK=False, dmaV=False, nxt="V")
    p = blk("endc")
    p.e("L_end:")
    if opts.get("diag"):
        stamp(p, 4)
    end_common(p, opts)
    p = blk("endp")
    end_plain(p, opts)
    p = blk("endcomb")
    end_comb(p, opts)
    p = blk("done")
    p.e("L_l2_done:")
    if opts.get("diag"):
        stamp(p, 5)
        diag_store(p, 1, 82, S_WAVE, S_T0, S_T1)
    p.e("L_l2_end:\ns_endpgm")
    p = blk("trans")
    p.e(f"L_trans:\ns_mov_b32 s{S_WRAP}, -1\ns_mov_b32 s{S_WRAPV}, -1\n@wait a[64:127]\ns_bitcmp1_b32 s{S_MODE}, 1\ns_cbranch_scc1 L_trans0")
    p = blk("t12")
    step(p, 1, "full", "first", opts, qset=1, reloadQ=True, cap=3)
    step(p, 0, "first", "full", opts, qset=1, partial=True, cap=3)
    p.e(f"@wait a[0:63]\ns_andn2_b32 s{S_MODE}, s{S_MODE}, 1\ns_mov_b32 s{S_CNT}, s{S_CNT2}\ns_branch L_lentry")
    p = blk("t12z")
    p.e("L_trans0:")
    step(p, 1, "full", "firstD0", opts, qset=1, dmaK=False, dmaVnext=True, cap=3)
    step(p, 0, "first", "D1", opts, qset=1, dmaK=False, dmaV=False, nxt="V", partial=True, publish=True, cap=4)
    p.e("s_branch L_end")
    tailp = ["pred", "endc", "endp", "done"]
    tailc = ["pred", "endc", "endcomb", "done"]
    paths = [
        (["head", "lentry", "loop", "lexit"] + tailc, {"comb"}),
        (["head", "lentry", "loop", "lexit"] + tailp, set()),
    ]
    for pub in (set(), {"pub"}):
        o = {"q2"} | pub
        paths += [
            (["head", "lentry", "loop", "lexit", "trans", "t12", "lentry", "loop", "lexit"] + tailp, o),
            (["head", "lentry", "lexit", "trans", "t12", "lentry", "loop", "lexit"] + tailp, o),
            (["head", "lentry", "loop", "lexit", "trans", "t12", "lentry", "lexit"] + tailp, o),
            (["head", "lentry", "loop", "lexit", "trans", "t12z", "endc", "endp", "done"], o),
        ]
    layout = ["head", "lentry", "loop", "lexit", "pred", "endc", "endp", "endcomb", "done", "trans", "t12", "t12z"]
    return finalize_multi(B, paths, layout)


if __name__ == "__main__":
    import gen_l1
    opts = {"diag": True, "verbose": True}
    out = ""
    for name in ("l1_kernel", "l2_kernel"):
        out += f"; @launch kernel={name} grid=(256,1,1) block=(256,1,1) lds={LDS_MAX}\n"
    out += '.amdgcn_target "amdgcn-amd-amdhsa--gfx950"\n.text\n'
    out += kernel_text("l1_kernel", gen_l1.gen_l1(opts)) + kernel_text("l2_kernel", gen_l2(opts))
    out += '.section .rodata,"a"\n' + descriptor("l1_kernel") + "\n" + descriptor("l2_kernel") + "\n"
    open("l12.s", "w").write(out)
```

```python
from common import *
from gen_a import gen_trig_frag, PERMOFF

S_CTX, S_WO, S_OUT, S_U = 4, 8, 12, 16
W, T0, T1, RT, CT, XI = 40, 41, 42, 43, 44, 45
S_SOW = 48
S_SOC = 52
S_M0 = 56
OSLOT = 4 * 1056
NSL = 8
DEPTH = 6


def outproj(p, opts):
    e = p.e
    vDW, vRW, vL16 = 1, 2, 3
    A_C = 0
    A_W = 128
    ACC = 64
    e(f"s_mul_i32 s{T0}, s{XI}, 9363\ns_lshr_b32 s{T0}, s{T0}, 16\ns_mul_i32 s{T1}, s{T0}, 7\ns_sub_u32 s{CT}, s{XI}, s{T1}")
    e(f"s_and_b32 s{RT}, s2, 7\ns_lshl_b32 s{RT}, s{RT}, 2\ns_add_u32 s{RT}, s{RT}, s{T0}")
    e(f"s_lshl_b32 s{T0}, s{RT}, 19\ns_lshl_b32 s{T1}, s{W}, 15\ns_add_u32 s{T0}, s{T0}, s{T1}")
    srd_from(p, S_CTX, 82, off_sgpr=T0, off_imm=WS_CTX, size=16 << 20)
    e(f"s_mul_i32 s{T0}, s{W}, {1024*896}\ns_lshl_b32 s{T1}, s{CT}, 7\ns_add_u32 s{T0}, s{T0}, s{T1}")
    srd_from(p, S_WO, 78, off_sgpr=T0, size=4096*896)
    for k in range(4):
        e(f"s_mov_b32 s{S_SOW+k}, {736*k}\ns_mov_b32 s{S_SOC+k}, {131072*k}")
    e(f"s_mul_i32 s{S_M0}, s{W}, {NSL*OSLOT}")
    e(f"v_lshrrev_b32 v12, 4, v0\nv_lshlrev_b32 v12, 3, v12\nv_bfe_u32 v13, v0, 3, 1\nv_add_u32 v12, v12, v13")
    e(f"v_mul_u32_u24 v12, 896, v12\nv_and_b32 v13, 7, v0\nv_lshl_add_u32 v{vDW}, v13, 4, v12")
    e(f"v_lshlrev_b32 v{vL16}, 4, v0")

    def loads(s):
        sl = s % NSL
        out = [("m0", f"s_add_u32 m0, s{S_M0}, {sl*OSLOT}")]
        for k in range(4):
            out.append(("dma", f"buffer_load_dwordx4 v{vDW}, {sr(S_WO)}, s{S_SOW+k} offen offset:{k*1056} lds @w:S{sl}"))
        out.append(("s2", f"s_add_u32 s{S_WO}, s{S_WO}, {32*896}\ns_addc_u32 s{S_WO+1}, s{S_WO+1}, 0"))
        out.append(("s", f"s_sub_u32 s{S_WO+2}, s{S_WO+2}, {32*896}"))
        for k in range(4):
            out.append(("dma", f"buffer_load_dwordx4 {ar(A_C + 16*sl + 4*k)}, v{vL16}, {sr(S_CTX)}, s{S_SOC+k} offen offset:{(s & 3)*1024}"))
        if s & 3 == 3:
            out.append(("s2", f"s_add_u32 s{S_CTX}, s{S_CTX}, 4096\ns_addc_u32 s{S_CTX+1}, s{S_CTX+1}, 0"))
            out.append(("s", f"s_sub_u32 s{S_CTX+2}, s{S_CTX+2}, 4096"))
        return out

    for s in range(DEPTH):
        for k, t in loads(s):
            e(t)
    e(f"v_bfe_u32 v12, v0, 3, 2\nv_mul_u32_u24 v12, 1056, v12")
    e(f"v_lshrrev_b32 v13, 5, v0\nv_lshl_add_u32 v12, v13, 8, v12")
    e(f"v_bfe_u32 v13, v0, 2, 1\nv_lshl_add_u32 v12, v13, 7, v12")
    e(f"v_and_b32 v13, 3, v0\nv_lshl_add_u32 v12, v13, 3, v12\nv_add_u32 v{vRW}, s{S_M0}, v12")
    e(f"s_mul_i32 s{T0}, s{RT}, {64*1792}\ns_lshl_b32 s{T1}, s{CT}, 7\ns_add_u32 s{T0}, s{T0}, s{T1}\ns_add_u32 s{T0}, s{T0}, 896")
    srd_from(p, S_OUT, 80, off_sgpr=T0, size=2048*1792)

    def trs(s):
        sl = s % NSL
        return [f"ds_read_b64_tr_b16 {ar(A_W + 16*(s % 2) + 4*mb + 2*hf, 2)}, v{vRW} offset:{sl*OSLOT + hf*512 + mb*32} @r:S{sl}"
                for mb in range(4) for hf in range(2)]

    for t in trs(0):
        e(t)
    for s in range(32):
        mf = []
        for mb in range(4):
            for qb in range(4):
                d = vr(ACC + (mb * 4 + qb) * 4)
                mf.append(mfma16(d, ar(A_W + 16 * (s % 2) + 4 * mb), ar(A_C + 16 * (s % NSL) + 4 * qb), d if s else "0"))
        sc = LSched(16)
        if s + DEPTH < 32:
            prev = None
            for k, t in loads(s + DEPTH):
                prev = sc.add(t, 0, 0, 2 if k in ("dma", "s2") else 1, [(prev, 1 if k == "dma" else 0)] if prev else [])
        if s + 1 < 32:
            sc.chain(trs(s + 1), 1, -1)
        sc.emit(p, mf)
    PITCH = 272
    e("s_waitcnt lgkmcnt(0)\ns_barrier")
    e(f"s_mul_i32 s{T0}, s{W}, {64*PITCH}")
    e(f"v_and_b32 v12, 15, v0\nv_mul_u32_u24 v12, {PITCH}, v12\nv_lshrrev_b32 v13, 4, v0\nv_lshl_add_u32 v12, v13, 4, v12\nv_add_u32 v12, s{T0}, v12")
    for mb in range(4):
        for qb in range(4):
            e(f"ds_write_b128 v12, {vr(ACC + (mb*4+qb)*4)} offset:{qb*16*PITCH + mb*64}")
    e(f"s_lshl_b32 s{T0}, s{W}, 3\nv_lshrrev_b32 v13, 3, v0\nv_add_u32 v13, s{T0}, v13")
    e(f"v_and_b32 v14, 7, v0\nv_mul_u32_u24 v12, {PITCH}, v13\nv_lshl_add_u32 v12, v14, 5, v12")
    e(f"v_mul_u32_u24 v13, 1792, v13\nv_lshl_add_u32 v13, v14, 4, v13")
    e("s_waitcnt lgkmcnt(0)\ns_barrier")
    for h in range(2):
        for w in range(4):
            for k in range(2):
                e(f"ds_read_b128 {vr(64 + h*32 + w*8 + 4*k)}, v12 offset:{w*64*PITCH + h*32*PITCH + 16*k}")
    e(f"s_mov_b32 s{T0}, {32*1792}")
    for h in range(2):
        b = 64 + h * 32
        for k in range(8):
            e(f"v_add_f32 v{b+k}, v{b+k}, v{b+8+k}\nv_add_f32 v{b+16+k}, v{b+16+k}, v{b+24+k}")
        for k in range(8):
            e(f"v_add_f32 v{b+k}, v{b+k}, v{b+16+k}")
        for k in range(4):
            e(f"v_cvt_pk_bf16_f32 v{b+k}, v{b+2*k}, v{b+2*k+1}")
        e(f"buffer_store_dwordx4 {vr(b)}, v13, {sr(S_OUT)}, {'s%d' % T0 if h else '0'} offen")


def a3(p, opts):
    e = p.e
    PG, DG = RT, CT
    USLOT = 8448
    UB = 57344
    vDU, vRU, vL16, vO = 1, 2, 3, 4
    ACC = 128
    A_G, A_U = 0, 32
    e(f"s_sub_u32 s{T0}, s{XI}, 28\ns_lshl_b32 s{T0}, s{T0}, 3\ns_and_b32 s{T1}, s2, 7\ns_add_u32 s{T0}, s{T0}, s{T1}")
    e(f"s_cmp_ge_u32 s{T0}, 28\ns_cbranch_scc1 L_l3_end")
    e(f"s_mul_i32 s{PG}, s{T0}, 9363\ns_lshr_b32 s{PG}, s{PG}, 16\ns_mul_i32 s{T1}, s{PG}, 7\ns_sub_u32 s{DG}, s{T0}, s{T1}")
    e(f"s_lshl_b32 s{T0}, s{PG}, 10\ns_lshl_b32 s{T1}, s{W}, 8\ns_add_u32 s{T0}, s{T0}, s{T1}")
    srd_from(p, S_U, 82, off_sgpr=T0, off_imm=WS_U, size=448*4096)
    for k in range(8):
        e(f"s_mov_b32 s{48+k}, {4096*k - 1056*(k & 3)}")
    e(f"s_mul_i32 s{S_M0}, s{W}, {3*USLOT}\ns_add_u32 s{S_M0}, s{S_M0}, {UB}")
    e(f"v_lshrrev_b32 v12, 4, v0\nv_lshlrev_b32 v12, 15, v12\nv_and_b32 v13, 15, v0\nv_lshl_add_u32 v{vDU}, v13, 4, v12")

    def loads(s):
        sl = s % 3
        out = []
        for k in range(8):
            if k % 4 == 0:
                out.append(("m0", f"s_add_u32 m0, s{S_M0}, {sl*USLOT + (k >> 2)*4224}"))
            out.append(("dma", f"buffer_load_dwordx4 v{vDU}, {sr(S_U)}, s{48+k} offen offset:{(k & 3)*1056} lds @w:S{sl}"))
        out.append(("s2", f"s_add_u32 s{S_U}, s{S_U}, {32*4096}\ns_addc_u32 s{S_U+1}, s{S_U+1}, 0"))
        out.append(("s", f"s_sub_u32 s{S_U+2}, s{S_U+2}, {32*4096}"))
        return out
    for s in range(3):
        for k, t in loads(s):
            e(t)
    e(f"v_lshlrev_b32 v{vL16}, 4, v0")
    e(f"s_lshl_b32 s{T0}, s{DG}, 6\ns_lshr_b32 s{T1}, s{W}, 1\ns_lshl_b32 s{T1}, s{T1}, 5\ns_add_u32 s{T0}, s{T0}, s{T1}")
    e(f"s_and_b32 s{T1}, s{W}, 1\ns_lshl_b32 s{T1}, s{T1}, 2\ns_add_u32 s{T0}, s{T0}, s{T1}")
    e(f"v_bfe_u32 v12, v0, 2, 2\nv_lshlrev_b32 v12, 3, v12\nv_and_b32 v13, 3, v0\nv_add3_u32 v12, v12, v13, s{T0}")
    e(f"v_cvt_f32_u32 v5, v12\nv_mul_f32 v5, {f32(1/448)}, v5")
    e(f"v_lshrrev_b32 v6, 4, v0\nv_lshlrev_b32 v6, 2, v6\nv_cvt_f32_u32 v6, v6\nv_mul_f32 v6, v6, v5\nv_add_f32 v7, {f32(0.25)}, v6")
    e(f"s_lshl_b32 s{T0}, s{W}, 10\nv_add_u32 v8, s{T0}, v{vL16}")
    e(f"v_mul_f32 v9, {f32(224.0)}, v5\nv_cos_f32 v9, v9\nv_cmp_gt_u32 s[60:61], 16, v0")
    for ks in range(14):
        dst = 20 + 4 * (ks % 2)
        if ks <= 6:
            gen_trig_frag(e, dst, 5, 6, [32 * ks + o for o in PERMOFF], 16)
        else:
            gen_trig_frag(e, dst, 5, 7, [32 * ks - 224 + o for o in PERMOFF], 16)
        if ks == 7:
            e(f"v_fmamk_f32 v16, v5, {f32(1.0)}, v7\nv_cos_f32 v16, v16\nv_cos_f32 v17, v7\ns_nop 0\nv_cndmask_b32 v17, v17, v9, s[60:61]")
            e(f"v_cvt_pk_bf16_f32 v{dst}, v17, v16")
        e(f"ds_write_b128 v8, {vr(dst)} offset:{ks*4096}")
    e(f"v_bfe_u32 v12, v0, 2, 3\nv_mul_u32_u24 v12, 1056, v12")
    e(f"v_lshrrev_b32 v13, 5, v0\nv_lshl_add_u32 v12, v13, 8, v12")
    e(f"v_and_b32 v13, 3, v0\nv_lshl_add_u32 v12, v13, 3, v12\nv_add_u32 v{vRU}, s{S_M0}, v12")
    e(f"s_lshl_b32 s{T0}, s{W}, 2\nv_and_b32 v12, 3, v0\nv_bfe_u32 v13, v0, 2, 1\nv_lshlrev_b32 v13, 4, v13\nv_add3_u32 v12, v12, v13, s{T0}")
    e(f"s_lshl_b32 s{T0}, s{PG}, 4\nv_lshlrev_b32 v12, 6, v12\nv_bfe_u32 v13, v0, 3, 1\nv_add3_u32 v12, v12, v13, s{T0}")
    e(f"s_lshl_b32 s{T0}, s{DG}, 7\nv_mul_u32_u24 v12, 1792, v12\nv_lshrrev_b32 v13, 4, v0\nv_lshlrev_b32 v13, 4, v13\nv_add3_u32 v{vO}, v12, v13, s{T0}")
    srd_from(p, S_OUT, 80, size=2048*1792)
    e("s_waitcnt lgkmcnt(0)\ns_barrier")

    def rds(s):
        sl = s % 3
        out = [f"ds_read_b128 {ar(A_G + 16*(s % 2) + 4*mb)}, v{vL16} offset:{s*4096 + mb*1024}" for mb in range(4)]
        out += [f"ds_read_b64_tr_b16 {ar(A_U + 32*(s % 2) + 4*nb + 2*hf, 2)}, v{vRU} offset:{sl*USLOT + hf*512 + nb*32} @r:S{sl}"
                for nb in range(8) for hf in range(2)]
        return out
    for t in rds(0):
        e(t)
    for s in range(14):
        mf = []
        for nb in range(8):
            for mb in range(4):
                d = vr(ACC + (nb * 4 + mb) * 4)
                mf.append(mfma16(d, ar(A_G + 16 * (s % 2) + 4 * mb), ar(A_U + 32 * (s % 2) + 4 * nb), d if s else "0"))
        sc = LSched(32)
        if s + 3 < 14:
            sc.fix(f"@wait {ar(A_U + 32*(s % 2), 32)}", 0)
            prev = None
            for k, t in loads(s + 3):
                prev = sc.add(t, 1, 0, 2 if k in ("dma", "s2") else 1, [(prev, 1 if k == "dma" else 0)] if prev else [])
        if s + 1 < 14:
            sc.chain(rds(s + 1), 12, 12)
        sc.emit(p, mf)
    for nb in range(8):
        e(f"s_mov_b32 s{T0}, {2*nb*1792}")
        for j in range(2):
            b0 = ACC + (nb * 4 + 2 * j) * 4
            b1 = b0 + 4
            e(f"v_cvt_pk_bf16_f32 v{b0}, v{b0}, v{b0+1}\nv_cvt_pk_bf16_f32 v{b0+1}, v{b0+2}, v{b0+3}")
            e(f"v_cvt_pk_bf16_f32 v{b0+2}, v{b1}, v{b1+1}\nv_cvt_pk_bf16_f32 v{b0+3}, v{b1+2}, v{b1+3}")
            e(f"buffer_store_dwordx4 {vr(b0)}, v{vO}, {sr(S_OUT)}, s{T0} offen offset:{j*64}")


def gen_l3(opts):
    B = {}
    p = B["head"] = Prog()
    e = p.e
    e("s_cmp_ge_u32 s2, 256\ns_cbranch_scc1 L_l3_end")
    e("s_load_dwordx2 s[78:79], s[0:1], 64\ns_load_dwordx2 s[80:81], s[0:1], 72\ns_load_dwordx2 s[82:83], s[0:1], 88")
    if opts.get("diag"):
        e("s_memrealtime s[92:93]\ns_memtime s[94:95]")
    e(f"v_lshrrev_b32 v12, 6, v0\nv_and_b32 v0, 63, v0\nv_readfirstlane_b32 s{W}, v12\ns_lshr_b32 s{XI}, s2, 3")
    e("s_waitcnt lgkmcnt(0)")
    if opts.get("diag"):
        e("v_writelane_b32 v11, s92, 0\nv_writelane_b32 v11, s94, 8")
    e(f"s_cmp_ge_u32 s{XI}, 28\ns_cbranch_scc1 L_a3")
    p = B["op"] = Prog()
    outproj(p, opts)
    p.e("s_branch L_l3_done")
    p = B["a3"] = Prog()
    p.e("L_a3:")
    a3(p, opts)
    p = B["done"] = Prog()
    p.e("L_l3_done:")
    if opts.get("diag"):
        diag_store(p, 2, 82, W, T0, T1)
    p.e("L_l3_end:\ns_endpgm")
    return finalize_multi(B, [(["head", "op", "done"], ()), (["head", "a3", "done"], ())], ["head", "op", "a3", "done"])
```

```python
import sys
from common import *
import gen_l1, gen_l2, gen_l3, gen_a

HEADER = open("concat_heads__spectral_gfnet__compressed_kv_cla__prompt.s.ref").read().split("; Override launch")[0]

def compress(out):
    head, body = out.split(".text\n", 1)
    macros = """.macro M d, a, b, c
v_mfma_f32_16x16x32_bf16 \\d, \\a, \\b, \\c
.endm
.macro CV d, a, b
v_cvt_pk_bf16_f32 \\d, \\a, \\b
.endm
.macro DR d, a, o
ds_read_b128 \\d, \\a offset:\\o
.endm
.macro DT d, a, o
ds_read_b64_tr_b16 \\d, \\a offset:\\o
.endm
"""
    import re
    body = body.replace("v_mfma_f32_16x16x32_bf16 ", "M ").replace("v_cvt_pk_bf16_f32 ", "CV ")
    body = re.sub(r"ds_read_b128 (\S+), (\S+) offset:(\d+)", r"DR \1,\2,\3", body)
    body = re.sub(r"ds_read_b64_tr_b16 (\S+), (\S+) offset:(\d+)", r"DT \1,\2,\3", body)
    body = body.replace(" ; merged", "").replace(", ", ",")
    return head + ".text\n" + macros + body


def build(opts, path):
    ks = [("a1_kernel", gen_a.gen_a1, 256, 58016, 256, 192),
          ("a2_kernel", gen_a.gen_a2, 57, 0, 512, 256),
          ("l1_kernel", gen_l1.gen_l1, 256, LDS_MAX, 512, 256),
          ("l2_kernel", gen_l2.gen_l2, 256, LDS_MAX, 512, 256),
          ("l3_kernel", gen_l3.gen_l3, 256, LDS_MAX, 512, 256)]
    out = HEADER
    for name, g, grid, lds, nv, acc in ks:
        out += f"; @launch kernel={name} grid=({grid},1,1) block=(256,1,1) lds={lds}\n"
    out += '.amdgcn_target "amdgcn-amd-amdhsa--gfx950"\n.text\n'
    for name, g, grid, lds, nv, acc in ks:
        out += kernel_text(name, g(opts))
    out += '.section .rodata,"a"\n'
    for name, g, grid, lds, nv, acc in ks:
        out += descriptor(name, nv, acc) + "\n"
    out = compress(out)
    open(path, "w").write(out)
    print(path, len(out), "bytes")

if __name__ == "__main__":
    build({"diag": True}, "all_diag.s")
    build({}, "concat_heads__spectral_gfnet__compressed_kv_cla__prompt.s")
```

```python
import re

TRANS = ("v_exp_f32", "v_log_f32", "v_rcp_f32", "v_rsq_f32", "v_sqrt_f32", "v_sin_f32", "v_cos_f32",
         "v_rcp_iflag_f32")


def parse_reg(tok):
    tok = tok.strip()
    if tok.startswith("-"):
        tok = tok[1:]
    if tok.startswith("abs(") and tok.endswith(")"):
        tok = tok[4:-1]
    if tok.startswith("|") and tok.endswith("|"):
        tok = tok[1:-1]
    m = re.fullmatch(r"([vas])(\d+)", tok)
    if m:
        return [(m.group(1), int(m.group(2)))]
    m = re.fullmatch(r"([vas])\[(\d+):(\d+)\]", tok)
    if m:
        return [(m.group(1), i) for i in range(int(m.group(2)), int(m.group(3)) + 1)]
    if tok == "vcc":
        return [("x", "vcc")]
    if tok in ("vcc_lo", "vcc_hi"):
        return [("x", "vcc")]
    if tok == "exec":
        return [("x", "exec")]
    if tok == "m0":
        return [("x", "m0")]
    return []


class Ins:
    __slots__ = ("text", "op", "kind", "rd", "wr", "passes", "srcA", "srcB", "srcC", "pre_wait", "pre_nop",
                 "x4store", "uid", "nowait")
    _n = 0

    def __init__(self, text, nowait=False):
        self.text = text
        self.uid = Ins._n
        Ins._n += 1
        self.pre_wait = {}
        self.pre_nop = 0
        self.nowait = nowait
        self.passes = 0
        self.srcA = self.srcB = self.srcC = ()
        self.x4store = False
        t = text.split(";")[0].strip()
        if t.startswith("@wait"):
            self.op = "waitpoint"
            self.kind = "waitpoint"
            self.rd = tuple(x for tok in t.split()[1:] for x in parse_reg(tok))
            self.wr = ()
            return
        if t.endswith(":") or t.startswith("."):
            self.op = "label"
            self.kind = "label"
            self.rd = self.wr = ()
            return
        parts = t.split(None, 1)
        op = parts[0]
        self.op = op
        rest = parts[1] if len(parts) > 1 else ""
        ops = [o.strip() for o in rest.split(",")] if rest else []
        mods = ""
        if ops:
            sp = ops[-1].split()
            if sp:
                ops[-1] = sp[0]
                mods = " ".join(sp[1:])
        R = [parse_reg(o) for o in ops]
        rd, wr = [], []
        flat = lambda L: [x for l in L for x in l]
        if op.startswith("v_mfma"):
            self.kind = "mfma"
            self.passes = 8 if "32x32x16" in op else 4
            assert "32x32x16" in op or "16x16x32" in op
            wr = R[0]
            self.srcA, self.srcB, self.srcC = tuple(R[1]), tuple(R[2]), tuple(R[3])
            rd = R[1] + R[2] + R[3]
        elif op.startswith("ds_read") or op.startswith("ds_bpermute") or op.startswith("ds_swizzle"):
            self.kind = "ds"
            wr = R[0]
            rd = flat(R[1:])
        elif op.startswith("ds_write"):
            self.kind = "ds"
            rd = flat(R)
        elif op.startswith("buffer_load") or op.startswith("global_load"):
            if " lds" in (" " + mods) or op.startswith("global_load_lds"):
                self.kind = "dma"
                rd = flat(R) + [("x", "m0")]
            else:
                self.kind = "vload"
                wr = R[0]
                rd = flat(R[1:])
        elif op.startswith("buffer_store") or op.startswith("global_store"):
            self.kind = "vstore"
            rd = flat(R)
            self.x4store = "x4" in op or "x3" in op
        elif op.startswith("buffer_atomic"):
            self.kind = "vload" if "sc0" in mods else "vstore"
            rd = flat(R)
            if "sc0" in mods:
                wr = R[0]
        elif op in ("buffer_inv", "buffer_wbl2"):
            self.kind = "vstore"
        elif op.startswith("s_load") or op in ("s_memtime", "s_memrealtime"):
            self.kind = "smem"
            wr = R[0]
            rd = flat(R[1:])
        elif op == "s_waitcnt":
            self.kind = "wait"
        elif op == "s_nop":
            self.kind = "nop"
        elif op in ("s_barrier", "s_endpgm", "s_sleep", "s_setprio"):
            self.kind = "misc"
        elif op.startswith("s_cbranch") or op == "s_branch":
            self.kind = "branch"
            if "vcc" in op:
                rd = [("x", "vcc")]
            elif "scc" in op:
                rd = [("x", "scc")]
            elif "exec" in op:
                rd = [("x", "exec")]
        elif op.startswith("s_cmp") or op.startswith("s_bitcmp"):
            self.kind = "salu"
            rd = flat(R)
            wr = [("x", "scc")]
        elif op.startswith("s_"):
            self.kind = "salu"
            wr = list(R[0])
            rd = flat(R[1:])
            if op in ("s_addk_i32", "s_mulk_i32"):
                rd += R[0]
            if "saveexec" in op:
                wr.append(("x", "exec"))
                rd.append(("x", "exec"))
            if op.startswith(("s_addc", "s_subb", "s_cselect")):
                rd.append(("x", "scc"))
            if not op.startswith(("s_mov", "s_mul", "s_cselect", "s_getreg", "s_movk")):
                wr.append(("x", "scc"))
        elif op.startswith("v_"):
            base = op.replace("_e32", "").replace("_e64", "").replace("_dpp", "")
            self.kind = "trans" if base in TRANS else "valu"
            if op.startswith("v_cmp"):
                wr = R[0]
                rd = flat(R[1:])
            elif op.startswith("v_permlane") and "swap" in op:
                wr = R[0] + R[1]
                rd = R[0] + R[1]
            elif op.startswith(("v_add_co", "v_sub_co", "v_addc_co", "v_subb_co")):
                wr = R[0] + R[1]
                rd = flat(R[2:])
            else:
                wr = list(R[0])
                rd = flat(R[1:])
                if base.startswith(("v_fmac", "v_mac", "v_dot2c", "v_writelane")) or "dpp" in op or "row_" in mods or "quad_perm" in mods:
                    rd += R[0]
                if base == "v_cndmask_b32" and len(ops) == 3:
                    rd.append(("x", "vcc"))
        else:
            raise ValueError("unknown op " + text)
        self.rd = tuple(rd)
        self.wr = tuple(wr)


class Loop:
    def __init__(self, body, sim=3):
        self.body = body
        self.sim = sim


class Alt:
    def __init__(self, body):
        self.body = body


class Opt:
    def __init__(self, body, name):
        self.body = body
        self.name = name


class Prog:
    def __init__(self):
        self.stack = [[]]
        self.tail = []

    def e(self, text, nowait=False):
        for line in text.split("\n"):
            line = line.strip()
            if not line:
                continue
            rd, wr = [], []
            nw = nowait
            if line.endswith(" @nw"):
                line = line[:-4]
                nw = True
            while True:
                m = re.search(r"\s@([rw]):(\S+)$", line)
                if not m:
                    break
                (rd if m.group(1) == "r" else wr).extend(("t", x) for x in m.group(2).split(","))
                line = line[:m.start()].rstrip()
            i = Ins(line, nw)
            if nw and i.kind == 'vload':
                i.wr = ()
            i.rd = tuple(i.rd) + tuple(rd)
            i.wr = tuple(i.wr) + tuple(wr)
            self.stack[-1].append(i)

    def begin(self):
        self.stack.append([])

    def end_loop(self, sim=3):
        b = self.stack.pop()
        self.stack[-1].append(Loop(b, sim))

    def end_opt(self, name):
        b = self.stack.pop()
        self.stack[-1].append(Opt(b, name))

    def end_alt(self):
        b = self.stack.pop()
        a = Alt(b)
        self.stack[-1].append(a)
        self.tail.append(a)

    @property
    def nodes(self):
        assert len(self.stack) == 1
        return self.stack[0]


def trace(nodes, take_alt, opts=()):
    out = []
    for n in nodes:
        if isinstance(n, Ins):
            out.append(n)
        elif isinstance(n, Loop):
            for _ in range(n.sim):
                out += trace(n.body, take_alt, opts)
        elif isinstance(n, Alt):
            if take_alt:
                out += trace(n.body, take_alt, opts)
        elif isinstance(n, Opt):
            if n.name in opts:
                out += trace(n.body, take_alt, opts)
    return out


def parse_wait(text):
    d = {}
    for name in ("vmcnt", "lgkmcnt"):
        m = re.search(name + r"\((\d+)\)", text)
        if m:
            d[name] = int(m.group(1))
    return d


MAXC = {"vmcnt": 63, "lgkmcnt": 15}


def insert_waits(tr):
    changed = False
    q = {"vmcnt": [], "lgkmcnt": []}
    def apply(c, n):
        while len(q[c]) > n:
            q[c].pop(0)
    for ins in tr:
        if ins.kind == "label":
            continue
        for c, n in ins.pre_wait.items():
            apply(c, n)
        if ins.kind == "wait":
            for c, n in parse_wait(ins.text).items():
                apply(c, n)
            continue
        touched = set(ins.rd) | {r for r in ins.wr if r[0] != "t"}
        for c in q:
            need = None
            has_smem = any(s for _, s in q[c])
            for k, (dst, smem) in enumerate(q[c]):
                if dst & touched:
                    n = len(q[c]) - k - 1
                    if has_smem:
                        n = 0
                    need = n if need is None else min(need, n)
            if need is not None and not ins.nowait:
                need = min(need, MAXC[c])
                old = ins.pre_wait.get(c)
                if old is None or need < old:
                    ins.pre_wait[c] = need
                    changed = True
                apply(c, need)
        if ins.kind == "ds":
            q["lgkmcnt"].append((set(ins.wr), False))
        elif ins.kind == "smem":
            q["lgkmcnt"].append((set(ins.wr), True))
        elif ins.kind in ("vload", "vstore", "dma"):
            q["vmcnt"].append((set(ins.wr), False))
    return changed


def hazard_need(p, c):
    need = 0
    pw, cr, cw = set(p.wr), set(c.rd), set(c.wr)
    isv = lambda s: {r for r in s if r[0] in "va"}
    iss = lambda s: {r for r in s if r[0] == "s" or r == ("x", "vcc")}
    pvalu = p.kind in ("valu", "trans")
    cvalu = c.kind in ("valu", "trans")
    if pvalu:
        if c.kind == "mfma" and isv(pw) & cr:
            need = max(need, 2)
        if c.kind == "mfma" and ("x", "exec") in pw:
            need = max(need, 4)
        if c.kind in ("vload", "vstore", "dma") and iss(pw) & cr:
            need = max(need, 5)
        if cvalu and iss(pw) & cr:
            need = max(need, 4 if c.op.startswith(("v_readlane", "v_writelane")) else 2)
        if cvalu and c.op.startswith(("v_readfirstlane", "v_readlane")) and isv(pw) & cr:
            need = max(need, 1)
        if cvalu and c.op.startswith("v_permlane") and isv(pw) & cr:
            need = max(need, 2)
        if cvalu and ("dpp" in c.text or "row_" in c.text or "quad_perm" in c.text) and isv(pw) & cr:
            need = max(need, 2)
        if p.kind == "trans" and c.kind == "valu" and isv(pw) & cr:
            need = max(need, 1)
        if c.kind == "salu" and iss(pw) & cr:
            need = max(need, 1)
        if c.kind == "branch" and iss(pw) & cr:
            need = max(need, 1)
    if p.kind == "mfma":
        big = 12 if p.passes == 8 else 8
        if c.kind == "mfma":
            if pw & (set(c.srcA) | set(c.srcB)):
                need = max(need, big)
            if pw & set(c.srcC):
                exact = tuple(p.wr) == c.srcC and p.passes == c.passes
                if not exact:
                    need = max(need, 10 if p.passes == 8 else 6)
            elif pw & cw:
                need = max(need, 10 if p.passes == 8 else 6)
        else:
            if cvalu and pw & (cr | cw):
                need = max(need, big)
            if c.kind in ("ds", "vload", "vstore", "dma") and pw & (cr | cw):
                need = max(need, big)
            if cvalu and set(p.srcC) & cw:
                need = max(need, 7 if p.passes == 8 else 3)
    if p.kind == "salu" and ("x", "m0") in pw and c.kind == "dma":
        need = max(need, 1)
    if p.kind == "vstore" and p.x4store:
        data = isv(set(p.rd))
        if data & cw:
            need = max(need, 2 if cvalu else 1)
    if p.kind == "ds" and p.op in ("ds_write_b128", "ds_write_b96") and cvalu and isv(set(p.rd)) & cw:
        need = max(need, 2)
    return need


def states(ins):
    if ins.kind in ("label", "waitpoint"):
        return 0
    if ins.kind == "nop":
        return int(ins.text.split()[1]) + 1
    return 1


def insert_nops(tr):
    changed = False
    hist = []
    for ins in tr:
        if ins.kind == "label":
            continue
        pre = ins.pre_nop
        dist = pre
        need_extra = 0
        for p in reversed(hist):
            if dist >= 20:
                break
            n = hazard_need(p, ins)
            if n > dist:
                need_extra = max(need_extra, n - dist)
            dist += states(p) + p.pre_nop
        if need_extra:
            ins.pre_nop += need_extra
            changed = True
        hist.append(ins)
        if len(hist) > 24:
            hist.pop(0)
    return changed


def finalize(prog, verbose=True):
    return finalize_multi({"m": prog}, [(["m"], ())], ["m"], verbose)


def finalize_multi(blocks, paths, layout, verbose=True):
    trs = []
    for names, opts in paths:
        for alt in (False, True):
            t = []
            for nm in names:
                t += trace(blocks[nm].nodes, alt, opts)
            trs.append(t)
    for _ in range(20):
        ch = False
        for tr in trs:
            ch |= insert_waits(tr)
        if not ch:
            break
    for _ in range(20):
        ch = False
        for tr in trs:
            ch |= insert_nops(tr)
        if not ch:
            break
    out = []
    stats = {"wait": 0, "nop": 0}

    def emit(nodes):
        for n in nodes:
            if isinstance(n, Ins):
                if n.pre_wait:
                    out.append("s_waitcnt " + " ".join(f"{c}({v})" for c, v in sorted(n.pre_wait.items(), reverse=True)))
                    stats["wait"] += 1
                k = n.pre_nop
                while k > 0:
                    m = min(k, 16)
                    out.append(f"s_nop {m-1}")
                    stats["nop"] += 1
                    k -= m
                if n.kind != "waitpoint":
                    out.append(n.text)
            elif isinstance(n, (Loop, Opt)):
                emit(n.body)
            elif isinstance(n, Alt):
                pass
    for nm in layout:
        emit(blocks[nm].nodes)
    for nm in layout:
        for a in blocks[nm].tail:
            emit(a.body)
    merged = []
    for line in out:
        if merged and line.startswith("s_waitcnt") and merged[-1].startswith("s_waitcnt"):
            a, b = parse_wait(merged[-1]), parse_wait(line)
            for c, v in b.items():
                a[c] = min(a.get(c, v), v)
            merged[-1] = "s_waitcnt " + " ".join(f"{c}({v})" for c, v in sorted(a.items(), reverse=True)) + " ; merged"
            stats["merged"] = stats.get("merged", 0) + 1
        else:
            merged.append(line)
    out = merged
    if verbose:
        print("auto waits:", stats["wait"], "auto nops:", stats["nop"], "lines:", len(out))
    return "\n".join(out)


def weave(p, mfmas, fill):
    for s in fill.get(-1, []):
        p.e(s)
    for i, m in enumerate(mfmas):
        p.e(m)
        for s in fill.get(i, []):
            p.e(s)
    extra = [k for k in fill if k >= len(mfmas)]
    assert not extra, extra


class Fill(dict):
    def add(self, i, s):
        self.setdefault(i, []).append(s)

    def spread(self, items, start, step):
        for k, s in enumerate(items):
            self.add(int(start + k * step), s)


def descriptor(name, nvgpr=512, accum=256, nsgpr=102):
    return f""".p2align 6
.amdhsa_kernel {name}
  .amdhsa_next_free_vgpr {nvgpr}
  .amdhsa_next_free_sgpr {nsgpr}
  .amdhsa_accum_offset {accum}
  .amdhsa_group_segment_fixed_size 0
  .amdhsa_kernarg_size 96
  .amdhsa_user_sgpr_count 2
  .amdhsa_user_sgpr_kernarg_segment_ptr 1
  .amdhsa_system_sgpr_workgroup_id_x 1
  .amdhsa_float_denorm_mode_32 3
.end_amdhsa_kernel"""


class Sched:
    def __init__(self, n, cap=2):
        self.n = n
        self.cap = cap
        self.used = [0] * n
        self.fill = Fill()
        self.last = {}
        self.after = []

    def place(self, text, g, cost=1, stream=None, force=False):
        g = max(0, int(g))
        if stream is not None:
            g = max(g, self.last.get(stream, 0))
        if not force:
            while g < self.n and self.used[g] + cost > self.cap:
                g += 1
        if g >= self.n:
            self.after.append(text)
            g = self.n
        else:
            self.used[g] += cost
            self.fill.add(g, text)
        if stream is not None:
            self.last[stream] = g
        return g

    def emit(self, p, mfmas):
        assert len(mfmas) == self.n
        weave(p, mfmas, self.fill)
        for t in self.after:
            p.e(t)


class Item:
    __slots__ = ("text", "cost", "lo", "dl", "deps", "gap", "seq")

    def __init__(self, text, cost, lo, dl, deps):
        self.text, self.cost, self.lo, self.dl, self.deps = text, cost, lo, dl, deps
        self.gap = None


class LSched:
    def __init__(self, n, cap=2):
        self.n = n
        self.cap = cap
        self.items = []
        self.fixed = {}

    def add(self, text, lo=0, dl=None, cost=1, deps=()):
        deps = [(d, 0) if isinstance(d, Item) else d for d in deps if d is not None]
        it = Item(text, cost, lo, lo if dl is None else dl, deps)
        it.seq = len(self.items)
        self.items.append(it)
        return it

    def fix(self, text, g, cost=1):
        it = Item(text, cost, g, g, [])
        it.gap = g
        it.seq = -1
        self.fixed.setdefault(g, []).append(it)
        return it

    def chain(self, texts, lo, dl0=None, dl1=None, dep=None, dist=0):
        prev = dep
        out = []
        n = len(texts)
        for k, t in enumerate(texts):
            c = 1
            if isinstance(t, tuple):
                t, c = t
            dl = None if dl0 is None else dl0 + ((dl1 - dl0) * k / max(1, n - 1) if dl1 is not None else 0)
            prev = self.add(t, lo, dl, c, [(prev, dist)] if prev is not None else [])
            out.append(prev)
        return out

    def run(self):
        fill = Fill()
        todo = list(self.items)
        g = 0
        self.wasted = 0
        while todo or g < self.n:
            cap = self.cap if g < self.n else 10 ** 9
            for it in self.fixed.get(g, []):
                fill.add(min(g, self.n - 1), it.text)
                cap -= it.cost
            while cap > 0 and todo:
                best = None
                for it in todo:
                    if it.lo > g and g < self.n:
                        continue
                    if it.cost > cap:
                        continue
                    ok = True
                    for d, dist in it.deps:
                        if d.gap is None or (d.gap + dist > g and g < self.n):
                            ok = False
                            break
                    if ok and (best is None or (it.dl, it.seq) < (best.dl, best.seq)):
                        best = it
                if best is None:
                    break
                best.gap = g
                todo.remove(best)
                cap -= best.cost
                fill.add(min(g, self.n - 1), best.text)
            if g < self.n and cap > 0:
                self.wasted += cap
            g += 1
            if g > self.n + 2 and todo:
                raise RuntimeError("unschedulable: " + todo[0].text)
        self.fill = fill
        self.overflow = sum(1 for it in self.items if it.gap >= self.n)
        return fill

    def emit(self, p, mfmas):
        assert len(mfmas) == self.n
        weave(p, mfmas, self.run())
```

```python
from asmfw import *
import struct
WS_K = 0
WS_V = 16 << 20
WS_Q = 32 << 20
WS_CTX = 48 << 20
CTX_PITCH = 131072 + 4096
CTX_SIZE = 128 * CTX_PITCH
WS_PO = 48 << 20
PO_SIZE = 128 * 14 * 16384
WS_PART = 80 << 20
WS_Z = 96 << 20
WS_U = 100 << 20
WS_TF = 104 << 20
WS_TG = 105 << 20
WS_DBG = 128 << 20
LDS_MAX = 163840

def f32(x):
    return "0x%08x" % struct.unpack("<I", struct.pack("<f", x))[0]

def vr(b, n=4):
    return f"v[{b}:{b+n-1}]" if n > 1 else f"v{b}"
def ar(b, n=4):
    return f"a[{b}:{b+n-1}]" if n > 1 else f"a{b}"
def sr(b, n=4):
    return f"s[{b}:{b+n-1}]" if n > 1 else f"s{b}"

def mfma16(d, a, b, c):
    return f"v_mfma_f32_16x16x32_bf16 {d}, {a}, {b}, {c}"

def srd_from(p, srd, ptr, off_sgpr=None, off_imm=0, size=None, size_sgpr=None):
    if off_sgpr is None and off_imm == 0:
        p.e(f"s_mov_b32 s{srd}, s{ptr}\ns_mov_b32 s{srd+1}, s{ptr+1}")
    else:
        if off_sgpr is not None:
            p.e(f"s_add_u32 s{srd}, s{ptr}, s{off_sgpr}\ns_addc_u32 s{srd+1}, s{ptr+1}, 0")
            if off_imm:
                p.e(f"s_add_u32 s{srd}, s{srd}, {off_imm}\ns_addc_u32 s{srd+1}, s{srd+1}, 0")
        else:
            p.e(f"s_add_u32 s{srd}, s{ptr}, {off_imm}\ns_addc_u32 s{srd+1}, s{ptr+1}, 0")
    if size_sgpr is not None:
        p.e(f"s_mov_b32 s{srd+2}, s{size_sgpr}")
    elif off_sgpr is not None:
        p.e(f"s_sub_u32 s{srd+2}, {size}, s{off_sgpr}")
    else:
        p.e(f"s_mov_b32 s{srd+2}, {size}")
    p.e(f"s_mov_b32 s{srd+3}, 0x20000")

def kernel_text(name, body):
    return f".p2align 8\n.type {name},@function\n{name}:\n{body}\n"

def stamp(p, slot, sreg=72):
    p.e(f"s_memrealtime s[{sreg}:{sreg+1}]\ns_memtime s[{sreg+2}:{sreg+3}]\ns_waitcnt lgkmcnt(0)\nv_writelane_b32 v11, s{sreg}, {slot}\nv_writelane_b32 v11, s{sreg+2}, {8+slot}")

def diag_store(p, region, ws_ptr, s_wave, t0, t1):
    e = p.e
    e("s_waitcnt vmcnt(0)")
    stamp(p, 7)
    e(f"s_lshl_b32 s{t0}, s2, 8\ns_lshl_b32 s{t1}, s{s_wave}, 6\ns_add_u32 s{t0}, s{t0}, s{t1}")
    srd_from(p, 84, ws_ptr, off_sgpr=None, off_imm=WS_DBG + region * 65536, size=65536)
    e("v_mbcnt_lo_u32_b32 v12, -1, 0\nv_mbcnt_hi_u32_b32 v12, -1, v12\nv_lshlrev_b32 v13, 2, v12")
    e(f"v_add_u32 v13, s{t0}, v13\nv_cmp_gt_u32 vcc, 16, v12\ns_and_saveexec_b64 s[88:89], vcc")
    e("buffer_store_dword v11, v13, s[84:87], 0 offen")
    e("s_waitcnt vmcnt(0)")
```

```python
from common import *
import math

SLOT = 33024
LA = [0, SLOT]
LB = [2 * SLOT, 3 * SLOT]
LSP = 4 * SLOT
XSLOT = 16480
QW = [LB[0], LB[1], LA[1]]
QX = [LSP, LA[0], LA[0] + XSLOT]

S_C, S_W, S_O, S_X, S_WQ, S_QO = 4, 8, 12, 16, 20, 24
S_SOA, S_SOB, S_SOX = 32, 40, 48
S_M0A, S_M0B = 52, 56
S_MX = 60
S_MA1 = 61
S_WAVE, S_H, S_G, S_T0, S_T1, S_CNT, S_ST, S_SCALE = 62, 63, 64, 65, 66, 67, 68, 69
V_AR, V_BR, V_AD, V_BD, V_L16, V_XR, V_XD, V_WR_A1, V_WR_B, V_XR_SP = 1, 2, 3, 4, 5, 6, 7, 8, 9, 10
V_TMP = 12
A_TC, A_TW, A_DUM = 200, 201, 202
S_TC, S_TW = 84, 88
S_TOC, S_TOW = 70, 71
A_B = [0, 64]
A_AR = 128
A_QW = 0
A_QX = [160, 176]


def acc_map(variant):
    if variant == "K":
        ag = [(7, 1), (7, 3), (7, 5), (7, 7)]
    else:
        ag = [(7, 4), (7, 5), (7, 6), (7, 7)]
    m = {}
    nv = 16
    for i in range(8):
        for j in range(8):
            if (i, j) in ag:
                m[(i, j)] = ("a", 240 + 4 * ag.index((i, j)))
            else:
                m[(i, j)] = ("v", nv)
                nv += 4
    assert nv == 256
    return m


def reg(t, n=4):
    return vr(t[1], n) if t[0] == "v" else ar(t[1], n)


def q_acc_map(variant, m):
    if variant == "K":
        freed = [m[(i, j)] for i in range(8) for j in (1, 3, 5, 7)]
    else:
        freed = [m[(i, j)] for i in (1, 3, 5, 7) for j in range(8)]
    order = list(range(12)) + [12, 14, 13, 15]
    q = {}
    for n, db in enumerate(order):
        q[(db, 0)] = freed[2 * n]
        q[(db, 1)] = freed[2 * n + 1]
    return q


def dma_A(slot):
    out = []
    for e in range(2):
        out.append(("m0", f"s_mov_b32 m0, s{S_M0A + 2*slot + e}"))
        for g in range(4):
            out.append(("dma", f"buffer_load_dwordx4 v{V_AD}, {sr(S_C)}, s{S_SOA + 4*e + g} offen offset:{g*1024} lds @w:LA{slot}"))
    out.append(("salu", f"s_add_u32 s{S_C}, s{S_C}, 128"))
    out.append(("salu", f"s_addc_u32 s{S_C+1}, s{S_C+1}, 0"))
    out.append(("salu", f"s_sub_u32 s{S_C+2}, s{S_C+2}, 128"))
    return out


def dma_W(srd, ldsbase, tag):
    out = []
    for e in range(2):
        if ldsbase in LB:
            out.append(("m0", f"s_mov_b32 m0, s{S_M0B + 2*LB.index(ldsbase) + e}"))
        else:
            assert ldsbase == LA[1]
            out.append(("m0", f"s_add_u32 m0, s{S_MA1}, {e*4128}"))
        for j in range(4):
            out.append(("dma", f"buffer_load_dwordx4 v{V_BD}, {sr(srd)}, s{S_SOB + 4*e + j} offen offset:{j*1024} lds @w:{tag}"))
    out.append(("salu", f"s_add_u32 s{srd}, s{srd}, {64*8192}"))
    out.append(("salu", f"s_addc_u32 s{srd+1}, s{srd+1}, 0"))
    out.append(("salu", f"s_sub_u32 s{srd+2}, s{srd+2}, {64*8192}"))
    return out


def dma_X(ldsbase, tag):
    out = [("m0", f"s_add_u32 m0, s{S_MX}, {ldsbase}")]
    for e in range(2):
        for g in range(2):
            out.append(("dma", f"buffer_load_dwordx4 v{V_XD}, {sr(S_X)}, s{S_SOX + 2*e + g} offen offset:{e*2048 + g*1024} lds @w:{tag}"))
    out.append(("salu", f"s_add_u32 s{S_X}, s{S_X}, 128"))
    out.append(("salu", f"s_addc_u32 s{S_X+1}, s{S_X+1}, 0"))
    out.append(("salu", f"s_sub_u32 s{S_X+2}, s{S_X+2}, 128"))
    return out


def touch_pair():
    return [f"buffer_load_dword a{A_DUM}, v0, {sr(S_TC)}, s{S_TOC} offen @nw",
            f"buffer_load_dword a{A_DUM}, v15, {sr(S_TW)}, s{S_TOW} offen @nw",
            f"s_add_u32 s{S_TOC}, s{S_TOC}, 256",
            f"s_add_u32 s{S_TOW}, s{S_TOW}, {128*8192}"]


def touch_far():
    out = [f"s_lshl_b32 s{S_T0}, s2, 2", f"s_add_u32 s{S_T0}, s{S_T0}, s{S_WAVE}",
           f"s_mul_i32 s{S_T1}, s{S_T0}, {28*128}",
           f"v_lshlrev_b32 v13, 3, v{V_L16}", f"v_cmp_gt_u32 vcc, {28*16}, v{V_L16}",
           f"v_cndmask_b32 v13, v12, v13, vcc",
           f"buffer_load_dword a{A_DUM}, v13, s[92:95], s{S_T1} offen @nw",
           f"s_mul_i32 s{S_T1}, s{S_T0}, {14*128}",
           f"v_cmp_gt_u32 vcc, {14*16}, v{V_L16}", f"v_cndmask_b32 v13, v12, v13, vcc",
           f"buffer_load_dword a{A_DUM}, v13, s[96:99], s{S_T1} offen @nw"]
    return out


def place_dma(sc, items, start, step):
    g = start
    for kind, t in items:
        if kind == "dma":
            gg = sc.place(t, g, cost=2, stream="dma")
            g = gg + step
        elif kind == "m0":
            gg = sc.place(t, max(g - 1, sc.last.get("dma", -1) + 1), stream="dma")
            g = max(g, gg + 1)
        else:
            sc.place(t, sc.last.get("dma", 0) + 1, stream="dma")
    return g


def a_read(t, i, ks):
    return f"ds_read_b128 {ar(A_AR + 8*(i % 4) + 4*ks)}, v{V_AR} offset:{LA[t % 2] + i*256 + ks*64}"


def b_read(t, j, ks, half):
    return (f"ds_read_b64_tr_b16 {ar(A_B[t % 2] + 8*j + 4*ks + 2*half, 2)}, v{V_BR} "
            f"offset:{(t % 2)*SLOT + 2048*ks + 512*half + 32*j}")


def kv_mfmas(variant, m, t, i, first):
    out = []
    for j in range(8):
        for ks in range(2):
            cf = ar(A_AR + 8 * (i % 4) + 4 * ks)
            wf = ar(A_B[t % 2] + 8 * j + 4 * ks)
            d = reg(m[(i, j)])
            c = "0" if (first and ks == 0) else d
            out.append(mfma16(d, wf, cf, c) if variant == "K" else mfma16(d, cf, wf, c))
    return out


def pack_pair(T0, T1, scale=None):
    out = []
    assert T0[0] == "v"
    b0 = T0[1]
    if T1[0] == "a":
        for k in range(4):
            out.append(f"v_accvgpr_read_b32 v{V_TMP+k}, a{T1[1]+k}")
        b1 = V_TMP
    else:
        b1 = T1[1]
    if scale is not None:
        for k in range(4):
            out.append(f"v_mul_f32 v{b0+k}, s{scale}, v{b0+k}")
        for k in range(4):
            out.append(f"v_mul_f32 v{b1+k}, s{scale}, v{b1+k}")
    out.append(f"v_cvt_pk_bf16_f32 v{b0}, v{b0}, v{b0+1}")
    out.append(f"v_cvt_pk_bf16_f32 v{b0+1}, v{b0+2}, v{b0+3}")
    out.append(f"v_cvt_pk_bf16_f32 v{b0+2}, v{b1}, v{b1+1}")
    out.append(f"v_cvt_pk_bf16_f32 v{b0+3}, v{b1+2}, v{b1+3}")
    return out


def kv_pairs(variant, m):
    out = []
    if variant == "K":
        for i in range(8):
            for jj in range(4):
                out.append((i, m[(i, 2*jj)], m[(i, 2*jj+1)], i * 8192, jj * 1024))
    else:
        for u in range(4):
            for j in range(8):
                out.append((2*u + 1, m[(2*u, j)], m[(2*u+1, j)], (u >> 1) * 32768 + (j >> 1) * 4096,
                            (u & 1) * 1024 + (j & 1) * 2048))
    return out


def barrier(sc_or_p, tags):
    return ["s_waitcnt lgkmcnt(0)", "s_barrier" + (" @r:" + ",".join(tags) if tags else "")]


def qw_read(u, db, ks, half):
    base = QW[u % 3]
    if base == LA[1]:
        v, off = V_WR_A1, 0
    else:
        v, off = V_WR_B, base - LB[0]
    return (f"ds_read_b64_tr_b16 {ar(A_QW + 8*(db % 8) + 4*ks + 2*half, 2)}, v{v} "
            f"offset:{off + 2048*ks + 512*half + 32*db}")


def qx_read(u, qb, ks):
    base = QX[u % 3]
    if base == LSP:
        v, off = V_XR_SP, 0
    else:
        v, off = V_XR, base
    return f"ds_read_b128 {ar(A_QX[u % 2] + 8*qb + 4*ks)}, v{v} offset:{off + qb*256 + ks*64}"


def q_mfmas(q, u, db):
    out = []
    for qb in range(2):
        for ks in range(2):
            wf = ar(A_QW + 8 * (db % 8) + 4 * ks)
            xf = ar(A_QX[u % 2] + 8 * qb + 4 * ks)
            d = reg(q[(db, qb)])
            c = "0" if (u == 0 and ks == 0) else d
            out.append(mfma16(d, wf, xf, c))
    return out


def gen_variant_full(p, variant, opts):
    m = acc_map(variant)
    q = q_acc_map(variant, m)
    sc1 = " " + opts.get("stmod", "")
    pairs = kv_pairs(variant, m)
    stores = []
    for (rdy, T0, T1, so, imm) in pairs:
        stores.append([f"s_mov_b32 s{S_ST}, {so}",
                       f"buffer_store_dwordx4 {reg(T0)}, v{V_L16}, {sr(S_O)}, s{S_ST} offen offset:{imm}{sc1}"])
    st_next = [0]

    def place_stores(sc, n, start, step):
        g = start
        for _ in range(n):
            if st_next[0] >= len(stores):
                return
            a, b = stores[st_next[0]]
            st_next[0] += 1
            if opts.get("nost"):
                continue
            gg = sc.place(a, g, stream="st")
            gg = sc.place(b, gg + 1, cost=2, stream="st")
            g = gg + step

    def kv_interval(t, last_tags):
        mf = []
        if t >= 1:
            mf += kv_mfmas(variant, m, t - 1, 6, t == 1) + kv_mfmas(variant, m, t - 1, 7, t == 1)
        base = len(mf)
        for i in range(6):
            mf += kv_mfmas(variant, m, t, i, t == 0)
        sc = Sched(len(mf))
        if t == 0:
            pre = [a_read(0, 0, 0), a_read(0, 0, 1)]
            for j in range(8):
                for ks in range(2):
                    for half in range(2):
                        pre.append(b_read(0, j, ks, half))
            pre += [a_read(0, 1, 0), a_read(0, 1, 1)]
            for s in pre:
                p.e(s)
            for i in range(2, 8):
                g = max(0, 16 * (i - 4) + 16)
                sc.place(a_read(0, i, 0), g, stream="a")
                sc.place(a_read(0, i, 1), g + 1, stream="a")
            Y = 20
            for s in barrier(sc, ["LB1"]):
                sc.place(s, Y, stream="bar", force=True)
            g = Y + 1
            for j in range(8):
                for ks in range(2):
                    for half in range(2):
                        g = sc.place(b_read(1, j, ks, half), g, stream="b") + 2
            g = place_dma(sc, dma_W(S_W, LB[0], "LB0"), Y + 2, 3)
            if opts.get("touch", True):
                for tt in touch_pair():
                    g = sc.place(tt, g + 2, cost=2 if tt.startswith("buffer") else 1, stream="dma")
        else:
            for i in range(8):
                g = 0 if i == 0 else (2 if i == 1 else 16 * i - 16)
                sc.place(a_read(t, i, 0), g, stream="a")
                sc.place(a_read(t, i, 1), g + 1, stream="a")
            if t + 1 <= 15:
                g = 33
                for j in range(8):
                    for ks in range(2):
                        for half in range(2):
                            g = sc.place(b_read(t + 1, j, ks, half), g, stream="b") + 2.6
            items = []
            if t + 1 <= 15:
                items += dma_A((t + 1) % 2)
            if t + 2 <= 15:
                items += dma_W(S_W, LB[t % 2], f"LB{t % 2}")
            if t == 14:
                items += dma_W(S_WQ, QW[0], "QW0") + dma_X(QX[0], "QX0")
            if t == 15:
                items += dma_W(S_WQ, QW[1], "QW1") + dma_X(QX[1], "QX1")
            g = place_dma(sc, items, 3, 4)
            if t in (2,) and opts.get("touch", True):
                for tt in touch_pair():
                    g = sc.place(tt, g + 2, cost=2 if tt.startswith("buffer") else 1, stream="dma")
            if t == 1 and opts.get("touch", True):
                for tt in touch_far():
                    g = sc.place(tt, g + 1, cost=2 if tt.startswith("buffer") else 1, stream="dma")
            if t == 15:
                for n, (rdy, T0, T1, so, imm) in enumerate(pairs):
                    if rdy <= 4:
                        g = base + 16 * (rdy + 1) + 5
                        for s in pack_pair(T0, T1):
                            sc.place(s, g, stream="pk")
                place_stores(sc, opts.get("stn", [4,4,5])[0], 90, 6 if opts.get("stn", [4,4,5])[0] <= 4 else 1)
        sc.emit(p, mf)
        for s in barrier(p, last_tags):
            p.e(s)

    kv_interval(0, ["LA1", "LB0"])
    kv_interval(1, ["LA0", "LB1"])
    p.e(f"s_mov_b32 s{S_CNT}, 6")
    p.begin()
    p.e(f".p2align 4\nL_kv_loop_{variant}:")
    kv_interval(2, ["LA1", "LB0"])
    kv_interval(3, ["LA0", "LB1"])
    p.e(f"s_sub_u32 s{S_CNT}, s{S_CNT}, 1\ns_cmp_lg_u32 s{S_CNT}, 0\ns_cbranch_scc1 L_kv_loop_{variant}")
    p.end_loop()
    kv_interval(14, ["LA1"])
    kv_interval(15, ["QW0", "QX0"])
    if opts.get("diag"):
        stamp(p, 2)

    qstore_so = [0]

    def q_interval(u):
        mf = []
        if u == 0:
            mf += kv_mfmas(variant, m, 15, 6, False) + kv_mfmas(variant, m, 15, 7, False)
        else:
            for db in range(12, 16):
                mf += q_mfmas(q, u - 1, db)
        base = len(mf)
        if u <= 6:
            for db in range(12):
                mf += q_mfmas(q, u, db)
        sc = Sched(len(mf))
        if u <= 6:
            for qb in range(2):
                for ks in range(2):
                    sc.place(qx_read(u, qb, ks), 0, stream="r")
            for db in range(16):
                lo = base + (db - 8) * 4 + 3 if db >= 8 else (base - 16 + (db - 4) * 4 + 3 if (db >= 4 and u > 0) else 0)
                g = max(lo, 2 + db * (len(mf) - 12) / 16.0)
                for ks in range(2):
                    for half in range(2):
                        sc.place(qw_read(u, db, ks, half), g, stream="r")
            items = []
            if u + 2 <= 6:
                items += dma_W(S_WQ, QW[(u + 2) % 3], f"QW{(u+2) % 3}") + dma_X(QX[(u + 2) % 3], f"QX{(u+2) % 3}")
            place_dma(sc, items, 3, 3)
        if u == 0:
            for n, (rdy, T0, T1, so, imm) in enumerate(pairs):
                if rdy >= 5:
                    g = max(0, 16 * (rdy - 5) + 5)
                    for s in pack_pair(T0, T1):
                        sc.place(s, g, stream="pk")
            place_stores(sc, opts.get("stn", [4,4,5])[1], 50, 6 if opts.get("stn", [4,4,5])[1] <= 4 else 1)
        elif u <= 5:
            place_stores(sc, opts.get("stn", [4,4,5])[2], opts.get("stg", 4), opts.get("sts", 10))
        if u == 7:
            place_stores(sc, 32, 0, 1)
        if u >= 6:
            for ds in range(8):
                if u == 6 and ds <= 4:
                    g = base + (2 * ds + 2) * 4 + 5
                elif u == 7 and ds >= 5:
                    g = max(0, (2 * ds + 2 - 12) * 4 + 5)
                else:
                    continue
                for qb in range(2):
                    T0, T1 = q[(2*ds, qb)], q[(2*ds+1, qb)]
                    for s in pack_pair(T0, T1, S_SCALE):
                        sc.place(s, g, stream="pk")
                    sc.place(f"s_mov_b32 s{S_ST}, {qb*8192 + (ds >> 2)*4096}", g, stream="pk")
                    if not opts.get("noq"):
                      sc.place(f"buffer_store_dwordx4 {reg(T0)}, v{V_L16}, {sr(S_QO)}, s{S_ST} offen offset:{(ds & 3)*1024}{sc1}",
                             g, cost=2, stream="pk")
        sc.emit(p, mf)
        if u <= 5:
            for s in barrier(p, [f"QW{(u+1) % 3}", f"QX{(u+1) % 3}"]):
                p.e(s)

    for u in range(8):
        q_interval(u)


def setup(p, opts):
    e = p.e
    e("s_cmp_ge_u32 s2, 256\ns_cbranch_scc1 L_l1_end")
    e("s_load_dwordx4 s[72:75], s[0:1], 24")
    e("s_load_dwordx4 s[76:79], s[0:1], 40")
    e("s_load_dwordx2 s[80:81], s[0:1], 56")
    e("s_load_dwordx2 s[82:83], s[0:1], 88")
    if opts.get("diag"):
        e("s_memrealtime s[100:101]\ns_memtime s[28:29]")
    e(f"v_lshrrev_b32 v11, 6, v0\nv_and_b32 v0, 63, v0")
    e(f"v_readfirstlane_b32 s{S_WAVE}, v11")
    e(f"s_and_b32 s{S_H}, s2, 7\ns_lshl_b32 s{S_H}, s{S_H}, 1\ns_bfe_u32 s{S_T0}, s2, 0x10003\ns_add_u32 s{S_H}, s{S_H}, s{S_T0}")
    e(f"s_lshr_b32 s{S_G}, s2, 4")
    e(f"s_lshr_b32 s{S_T0}, s{S_WAVE}, 1\ns_lshl_b32 s{S_T0}, s{S_T0}, 2\ns_and_b32 s{S_T1}, s{S_WAVE}, 1\n"
      f"s_add_u32 s{S_T0}, s{S_T0}, s{S_T1}\ns_lshl_b32 s{S_T0}, s{S_T0}, 1")
    e(f"v_and_b32 v11, 48, v0\nv_bfe_u32 v12, v0, 3, 1\nv_add3_u32 v11, v11, v12, s{S_T0}")
    e(f"v_and_b32 v12, 7, v0\nv_lshlrev_b32 v12, 4, v12")
    e(f"v_lshl_add_u32 v{V_AD}, v11, 11, v12")
    e(f"v_mul_u32_u24 v{V_XD}, 896, v11\nv_add_u32 v{V_XD}, v{V_XD}, v12")
    e(f"s_lshr_b32 s{S_T0}, s{S_WAVE}, 1\ns_lshl_b32 s{S_T0}, s{S_T0}, 3\ns_lshl_b32 s{S_T1}, s{S_T1}, 1\ns_add_u32 s{S_T0}, s{S_T0}, s{S_T1}")
    e(f"v_lshrrev_b32 v11, 5, v0\nv_lshlrev_b32 v11, 2, v11\nv_add_u32 v11, s{S_T0}, v11")
    e(f"v_and_b32 v12, 31, v0\nv_lshlrev_b32 v12, 4, v12\nv_lshl_add_u32 v{V_BD}, v11, 13, v12")
    for ee in range(2):
        for g in range(4):
            e(f"s_mov_b32 s{S_SOA + 4*ee + g}, {2048*(64*g + 4*ee) - 1024*g}")
            e(f"s_mov_b32 s{S_SOB + 4*ee + g}, {8192*(16*g + ee) - 1024*g}")
    e(f"s_mul_i32 s{S_T0}, s{S_WAVE}, 8224")
    for s in range(2):
        for ee in range(2):
            e(f"s_add_u32 s{S_M0A + 2*s + ee}, s{S_T0}, {LA[s] + 4096*ee}")
    e(f"s_mul_i32 s{S_T0}, s{S_WAVE}, 8256")
    for s in range(2):
        for ee in range(2):
            e(f"s_add_u32 s{S_M0B + 2*s + ee}, s{S_T0}, {LB[s] + 4128*ee}")
    e(f"s_add_u32 s{S_MA1}, s{S_T0}, {LA[1]}")
    e(f"s_mul_i32 s{S_MX}, s{S_WAVE}, 4128")
    e("s_waitcnt lgkmcnt(0)")
    e(f"s_lshr_b32 s{S_T0}, s{S_G}, 1\ns_lshl_b32 s{S_T0}, s{S_T0}, 19")
    srd_from(p, S_C, 74, off_sgpr=S_T0, size=2048*1024*2)
    e(f"s_bitcmp1_b32 s{S_G}, 0\ns_cselect_b32 s78, s80, s78\ns_cselect_b32 s79, s81, s79")
    e(f"s_lshl_b32 s{S_T0}, s{S_H}, 9")
    srd_from(p, S_W, 78, off_sgpr=S_T0, size=1024*4096*2)
    pre = opts.get("pre", "")
    if not pre:
        for kind, t in dma_A(0) + dma_W(S_W, LB[0], "LB0") + dma_W(S_W, LB[1], "LB1") + dma_A(1):
            e(t)
    e(f"v_lshlrev_b32 v{V_L16}, 4, v0")
    if opts.get("touch", True):
        srd_from(p, S_TC, 74, size=2048*1024*2)
        e(f"s_and_b32 s{S_T0}, s2, 7\ns_lshl_b32 s{S_T0}, s{S_T0}, 10")
        srd_from(p, S_TW, 78, off_sgpr=S_T0, size=1024*4096*2)
        e(f"s_lshr_b32 s{S_T0}, s2, 3\ns_lshl_b32 s{S_T0}, s{S_T0}, 2\ns_add_u32 s{S_T0}, s{S_T0}, s{S_WAVE}\ns_lshl_b32 s{S_TOC}, s{S_T0}, 15")
        e(f"s_lshr_b32 s{S_T0}, s2, 5\ns_lshl_b32 s{S_T0}, s{S_T0}, 1\ns_bfe_u32 s{S_T1}, s2, 0x10003\ns_add_u32 s{S_T0}, s{S_T0}, s{S_T1}")
        e(f"s_lshl_b32 s{S_T0}, s{S_T0}, 2\ns_add_u32 s{S_T0}, s{S_T0}, s{S_WAVE}\ns_lshl_b32 s{S_TOW}, s{S_T0}, 14")
        e(f"v_mov_b32 v12, 0x7ff00000")
        e(f"v_lshrrev_b32 v13, 3, v0\nv_and_b32 v14, 7, v0\nv_lshlrev_b32 v14, 7, v14\nv_lshl_add_u32 v15, v13, 13, v14")
        e(f"v_cmp_gt_u32 vcc, 16, v0\nv_lshrrev_b32 v13, 1, v0\nv_and_b32 v14, 1, v0\nv_cndmask_b32 v15, v12, v15, vcc")
        e(f"v_cmp_gt_u32 vcc, 32, v0\nv_lshlrev_b32 v14, 7, v14\nv_lshl_add_u32 v13, v13, 11, v14\nv_cndmask_b32 v0, v12, v13, vcc")
        tp = touch_pair()
        if pre:
            if "c" in pre:
                e(tp[0])
            if "w" in pre:
                e(tp[1])
            if "2" in pre:
                for tt in tp[2:] + tp:
                    e(tt)
            if "s" in pre:
                e("s_sleep 10")
            for kind, t in dma_A(0) + dma_W(S_W, LB[0], "LB0") + dma_W(S_W, LB[1], "LB1") + dma_A(1):
                e(t)
        if "2" not in pre:
            for tt in tp[2:] + tp:
                e(tt)
    if opts.get("touch", True):
        srd_from(p, 92, 76, size=448*4096*2)
        srd_from(p, 96, 72, size=2048*448*2)
    e(f"s_lshl_b32 s{S_T0}, s{S_H}, 9")
    srd_from(p, S_WQ, 76, off_sgpr=S_T0, size=448*4096*2)
    e(f"s_mul_i32 s{S_T0}, s{S_G}, {128*896}")
    srd_from(p, S_X, 72, off_sgpr=S_T0, size=2048*448*2)
    for ee in range(2):
        for g in range(2):
            e(f"s_mov_b32 s{S_SOX + 2*ee + g}, {896*(64*g + 4*ee) - 2048*ee - 1024*g}")
    e(f"s_lshl_b32 s{S_T0}, s{S_H}, 20\ns_lshl_b32 s{S_T1}, s{S_G}, 16\ns_add_u32 s{S_T0}, s{S_T0}, s{S_T1}\n"
      f"s_lshl_b32 s{S_T1}, s{S_WAVE}, 14\ns_add_u32 s{S_T0}, s{S_T0}, s{S_T1}")
    srd_from(p, S_QO, 82, off_sgpr=S_T0, off_imm=WS_Q, size=16 << 20)
    e(f"s_mov_b32 s{S_SCALE}, {f32(math.log2(math.e)/16)}")
    e(f"v_lshrrev_b32 v14, 4, v{V_L16}", nowait=True)
    e("v_bfe_u32 v11, v14, 3, 1\nv_lshlrev_b32 v11, 2, v11")
    e("v_bfe_u32 v12, v14, 1, 1\nv_lshl_or_b32 v11, v12, 1, v11")
    e("v_bfe_u32 v12, v14, 2, 1\nv_or_b32 v11, v11, v12")
    e("v_lshrrev_b32 v12, 1, v11\nv_lshlrev_b32 v12, 5, v12")
    e("v_and_b32 v13, 1, v14\nv_lshl_add_u32 v12, v13, 7, v12")
    e("v_lshrrev_b32 v13, 4, v14\nv_lshl_add_u32 v12, v13, 4, v12")
    e(f"s_lshr_b32 s{S_T0}, s{S_WAVE}, 1\ns_lshl_b32 s{S_T0}, s{S_T0}, 11")
    e(f"v_lshl_add_u32 v{V_AR}, v11, 12, v12\nv_add_u32 v{V_AR}, s{S_T0}, v{V_AR}")
    e(f"s_lshl_b32 s{S_T0}, s{S_WAVE}, 9")
    e(f"v_lshl_add_u32 v{V_XR}, v11, 11, v12\nv_add_u32 v{V_XR}, s{S_T0}, v{V_XR}")
    e(f"v_add_u32 v{V_XR_SP}, {LSP}, v{V_XR}")
    e("v_bfe_u32 v11, v14, 2, 3")
    e("v_mul_u32_u24 v11, 4128, v11")
    e("v_lshrrev_b32 v12, 5, v14\nv_lshl_add_u32 v11, v12, 10, v11")
    e("v_and_b32 v12, 3, v14\nv_lshl_add_u32 v11, v12, 3, v11")
    e(f"v_add_u32 v{V_WR_A1}, {LA[1]}, v11\nv_add_u32 v{V_WR_B}, {LB[0]}, v11")
    e(f"s_and_b32 s{S_T0}, s{S_WAVE}, 1\ns_lshl_b32 s{S_T0}, s{S_T0}, 8")
    e(f"v_add_u32 v{V_BR}, s{S_T0}, v{V_WR_B}")
    e("v_mov_b32 v12, 0x7ff00000")
    if opts.get("diag"):
        e("v_writelane_b32 v11, s100, 0\nv_writelane_b32 v11, s28, 8")


def out_srd(p, variant):
    e = p.e
    e(f"s_lshr_b32 s{S_T1}, s{S_G}, 1")
    if variant == "K":
        e(f"s_lshl_b32 s{S_T0}, s{S_H}, 20\ns_lshl_b32 s{S_T1}, s{S_T1}, 17\ns_add_u32 s{S_T0}, s{S_T0}, s{S_T1}")
        e(f"s_lshr_b32 s{S_T1}, s{S_WAVE}, 1\ns_lshl_b32 s{S_T1}, s{S_T1}, 16\ns_add_u32 s{S_T0}, s{S_T0}, s{S_T1}")
        e(f"s_and_b32 s{S_T1}, s{S_WAVE}, 1\ns_lshl_b32 s{S_T1}, s{S_T1}, 12\ns_add_u32 s{S_T0}, s{S_T0}, s{S_T1}")
        srd_from(p, S_O, 82, off_sgpr=S_T0, off_imm=WS_K, size=16 << 20)
    else:
        e(f"s_lshl_b32 s{S_T0}, s{S_H}, 20\ns_lshl_b32 s{S_T1}, s{S_T1}, 17\ns_add_u32 s{S_T0}, s{S_T0}, s{S_T1}")
        e(f"s_lshr_b32 s{S_T1}, s{S_WAVE}, 1\ns_lshl_b32 s{S_T1}, s{S_T1}, 16\ns_add_u32 s{S_T0}, s{S_T0}, s{S_T1}")
        e(f"s_and_b32 s{S_T1}, s{S_WAVE}, 1\ns_lshl_b32 s{S_T1}, s{S_T1}, 14\ns_add_u32 s{S_T0}, s{S_T0}, s{S_T1}")
        srd_from(p, S_O, 82, off_sgpr=S_T0, off_imm=WS_V, size=16 << 20)


def gen_l1(opts):
    texts = []
    bodies = {}
    for variant in ("K", "V"):
        p = Prog()
        setup(p, opts)
        p.e(f"s_bitcmp1_b32 s{S_G}, 0\ns_cbranch_scc1 L_l1_V")
        p.e("L_split:")
        out_srd(p, variant)
        p.e("s_barrier @r:LA0,LB0")
        if opts.get("diag"):
            stamp(p, 1)
        gen_variant_full(p, variant, opts)
        if opts.get("diag"):
            stamp(p, 3)
            diag_store(p, 0, 82, S_WAVE, S_T0, S_T1)
        p.e("s_endpgm")
        txt = finalize(p)
        head, body = txt.split("L_split:\n")
        bodies[variant] = (head, body)
    assert bodies["K"][0] == bodies["V"][0]
    return bodies["K"][0] + bodies["K"][1] + "\nL_l1_V:\n" + bodies["V"][1] + "\nL_l1_end:\ns_endpgm"


if __name__ == "__main__":
    import sys
    opts = {"diag": True}
    body = gen_l1(opts)
    name = "l1_kernel"
    out = f"; @launch kernel={name} grid=(256,1,1) block=(256,1,1) lds={LDS_MAX}\n"
    out += '.amdgcn_target "amdgcn-amd-amdhsa--gfx950"\n.text\n' + kernel_text(name, body)
    out += '.section .rodata,"a"\n' + descriptor(name) + "\n"
    open("l1.s", "w").write(out)
```

```python
from common import *

PITCH = 32864
S_K, S_V, S_Q, S_CTX, S_PART, S_FLAG = 4, 8, 12, 16, 20, 24
S_KO, S_KO2, S_VO, S_VO2, S_WRAP, S_WRAPV = 28, 29, 30, 31, 32, 33
S_M0 = 34
S_WAVE, S_H, S_G, S_P, S_T0, S_T1, S_CNT, S_CNT2, S_MODE, S_THR, S_QA, S_QB, S_ST, S_BIT = range(42, 56)
S_BITV = 66
S_WO = 68
S_SOW = 84
S_MW = 67
S_CQ0, S_CQ1 = 56, 57
S_MSK = 58
V_KR, V_VR, V_DM, V_L16, V_Q0, V_Q1, V_NEGBIG = 1, 2, 3, 4, 5, 6, 7
V_L = 8
V_TS = 10
V_TMP = 13
V_NEGM = 16
V_E = 24
V_S = 32
V_P = 64
V_X = 96
V_WD, V_WR0, V_WR1 = 120, 121, 122
V_O = 128
A_Q = [0, 64]
A_R = 128


def TS(qb):
    return 10 + 2 * qb


def S(kb, qb):
    return V_S + (kb * 2 + qb) * 4


def P(par, ks, qb):
    return V_P + par * 16 + (ks * 2 + qb) * 4


def O(db, qb):
    return V_O + (db * 2 + qb) * 4


def ring(n):
    return A_R + 4 * (n % 16)


def k_read(par, n):
    return f"ds_read_b128 {ar(ring(n))}, v{V_KR} offset:{par*PITCH + n*1024}"


def v_read(par, m):
    return f"ds_read_b128 {ar(ring(m))}, v{V_VR} offset:{par*PITCH + m*1024}"


def dma_tile(which, par):
    srd, so, so2, m0 = (S_K, S_KO, S_KO2, S_M0) if which == "K" else (S_V, S_VO, S_VO2, S_M0 + 4)
    out = []
    for e in range(2):
        out.append(("m0", f"s_mov_b32 m0, s{m0 + 2*par + e}"))
        for i in range(4):
            out.append(("dma", f"buffer_load_dwordx4 v{V_DM}, {sr(srd)}, s{so2 if e else so} offen offset:{i*1024} lds @w:{which}{par}"))
    out.append(("salu", f"s_add_u32 s{so}, s{so}, 32768"))
    out.append(("salu2", f"s_cmp_eq_u32 s{so}, s{S_WRAP if which == 'K' else S_WRAPV}\ns_cselect_b32 s{so}, 0, s{so}"))
    out.append(("salu", f"s_add_u32 s{so2}, s{so}, 4096"))
    return out


def dma_wo(c):
    slot = c % 4
    out = []
    for e in range(2):
        out.append(("m0", f"s_add_u32 m0, s{S_MW}, {slot*PITCH + e*4096}"))
        for i in range(4):
            out.append(("dma", f"buffer_load_dwordx4 v{V_WD}, {sr(S_WO)}, s{S_SOW + 4*e + i} offen offset:{i*1024} lds @w:W{slot}"))
    out.append(("salu2", f"s_add_u32 s{S_WO}, s{S_WO}, 128\ns_addc_u32 s{S_WO+1}, s{S_WO+1}, 0"))
    out.append(("salu", f"s_sub_u32 s{S_WO+2}, s{S_WO+2}, 128"))
    return out


def wo_reads(c, n):
    slot = c % 4
    mb, ds = n >> 3, n & 7
    v = V_WR0 if slot < 2 else V_WR1
    return [f"ds_read_b64_tr_b16 {ar(ring(n) + 2*hf, 2)}, v{v} offset:{(slot & 1)*PITCH + ds*1024 + hf*512 + mb*32}" for hf in range(2)]


def outproj_phase(p, opts):
    e = p.e
    sc1 = " sc1" if opts.get("po_sc1") else ""
    e("s_waitcnt lgkmcnt(0)\ns_barrier @r:W0")
    for kind, t in dma_wo(3):
        e(t)
    for n in range(8):
        for t in wo_reads(0, n):
            e(t)
    acc = lambda mb, qb: V_S + (((mb >> 1) & 1) * 4 + (mb & 1) * 2 + qb) * 4

    def packs(sc, c, pr, lo, prev):
        for qb in range(2):
            b0, b1 = acc(2 * pr, qb), acc(2 * pr + 1, qb)
            ch = sc.chain([f"v_cvt_pk_bf16_f32 v{b0}, v{b0}, v{b0+1}", f"v_cvt_pk_bf16_f32 v{b0+1}, v{b0+2}, v{b0+3}",
                           f"v_cvt_pk_bf16_f32 v{b0+2}, v{b1}, v{b1+1}", f"v_cvt_pk_bf16_f32 v{b0+3}, v{b1+2}, v{b1+3}"], lo + 8 * qb, lo + 8 * qb - 70)
            a = sc.add(f"s_add_u32 s{S_ST}, s{S_CQ0+qb}, {(2*c + pr)*16384}", lo, lo - 70, 1, [prev])
            prev = sc.add(f"buffer_store_dwordx4 {vr(b0)}, v{V_L16}, {sr(S_CTX)}, s{S_ST} offen{sc1} @w:PO", lo, lo + 8 * qb - 70, 2, [a, ch[-1]])
        return prev

    for c in range(7):
        mf = []
        for mb in range(4):
            for qb in range(2):
                for ds in range(8):
                    d = vr(acc(mb, qb))
                    mf.append(mfma16(d, ar(ring(8 * mb + ds)), vr(O(2 * ds, qb)), d if ds else "0"))
        sc = LSched(64)
        prev = None
        for n in range(8, 32):
            lo = (n - 8) if n < 16 else 16 * ((n - 16) >> 3) + 8 + (n & 7)
            for t in wo_reads(c, n):
                prev = last = sc.add(t, lo, lo - 100, 1, [prev])
        sc.fix(waitpoint(range(8, 16)), 15)
        sc.fix(waitpoint(range(16, 24)), 31)
        if c < 6:
            sc.fix("s_waitcnt lgkmcnt(0)", 47)
            sc.fix(f"s_barrier @r:W{(c+1) % 4}", 47)
            for n in range(8):
                for t in wo_reads(c + 1, n):
                    prev = sc.add(t, 48 + n, -50, 1, [prev])
            sc.fix(waitpoint(range(0, 8)), 63)
        else:
            sc.fix(waitpoint(range(24, 32)), 47)
        st = None
        if c > 0:
            st0 = st = packs(sc, c - 1, 1, 0, st)
        st = packs(sc, c, 0, 16 + 8 + 5, st)
        if 1 <= c <= 3:
            add_dma(sc, dma_wo(c + 3), 2, 40)
        sc.emit(p, mf)
        assert last.gap <= 44, last.gap
        assert st.gap < 64
        assert c == 0 or st0.gap < 32, st0.gap
        if opts.get("verbose"):
            print("outproj chunk", c, "overflow", sc.overflow, "wasted", sc.wasted)
    sc = LSched(1)
    packs(sc, 6, 1, 0, None)
    for t in sc.run()[0]:
        e(t)


def place_dma(sc, items, start, step):
    g = start
    for kind, t in items:
        if kind == "dma":
            gg = sc.place(t, g, cost=DMA_COST, stream="dma")
            g = gg + step
        elif kind == "m0":
            gg = sc.place(t, max(g - 1, sc.last.get("dma", -1) + 1), stream="dma")
            g = max(g, gg + 1)
        else:
            sc.place(t, sc.last.get("dma", 0) + 1, cost=2 if kind == "salu2" else 1, stream="dma")
    return g


DMA_COST = 2


def qk_mfmas(qset, first, qbs):
    out = []
    for kb in range(4):
        for qb in qbs:
            for ds in range(8):
                d = vr(S(kb, qb))
                c = d if ds else ("0" if first else vr(V_NEGM + 4 * qb))
                out.append(mfma16(d, ar(ring(8 * kb + ds)), ar(A_Q[qset] + (qb * 8 + ds) * 4), c))
    return out


def pv_mfmas(par, first, qbs):
    out = []
    for db in range(16):
        for qb in qbs:
            for ks in range(2):
                d = vr(O(db, qb))
                c = "0" if (first and ks == 0) else d
                out.append(mfma16(d, ar(ring(2 * db + ks)), vr(P(par, ks, qb)), c))
    return out


def mask_ops(kb, qb, vq):
    out = []
    for r in range(4):
        out.append(f"v_cmp_le_i32 s[{S_MSK+2*r}:{S_MSK+2*r+1}], {16*kb + r}, v{vq}")
    for r in range(4):
        out.append(f"v_cndmask_b32 v{S(kb,qb)+r}, v{V_NEGBIG}, v{S(kb,qb)+r}, s[{S_MSK+2*r}:{S_MSK+2*r+1}]")
    return out


ecnt = [0]


def exp_ops(par, kb, qb, firstsum, sub=None):
    out = []
    base = V_E + 4 * (ecnt[0] % 2)
    ecnt[0] += 1
    s = S(kb, qb)
    ts = TS(qb)
    for r in range(4):
        if sub is not None:
            out.append((f"v_add_f32 v{base+r}, v{s+r}, v{sub}", 1))
            out.append((f"v_exp_f32 v{base+r}, v{base+r}", 2))
        else:
            out.append((f"v_exp_f32 v{base+r}, v{s+r}", 2))
    pd = P(par, kb >> 1, qb) + 2 * (kb & 1)
    if firstsum:
        out.append((f"v_add_f32 v{ts}, v{base}, v{base+1}", 1))
    else:
        out.append((f"v_add_f32 v{ts}, v{ts}, v{base}", 1))
        out.append((f"v_add_f32 v{ts}, v{ts}, v{base+1}", 1))
    out.append((f"v_cvt_pk_bf16_f32 v{pd}, v{base}, v{base+1}", 1))
    out.append((f"v_add_f32 v{ts}, v{ts}, v{base+2}", 1))
    out.append((f"v_add_f32 v{ts}, v{ts}, v{base+3}", 1))
    out.append((f"v_cvt_pk_bf16_f32 v{pd+1}, v{base+2}, v{base+3}", 1))
    return out


def xlane(op, r, t):
    return [f"v_mov_b32 v{t}, v{r}",
            f"v_permlane16_swap_b32 v{r}, v{t}",
            f"{op} v{r}, v{r}, v{t}",
            f"v_mov_b32 v{t}, v{r}",
            f"v_permlane32_swap_b32 v{r}, v{t}",
            f"{op} v{r}, v{r}, v{t}"]


def max_ops(kb, qb, first):
    m = V_X + qb
    s = S(kb, qb)
    if first:
        return [f"v_max3_f32 v{m}, v{s}, v{s+1}, v{s+2}", f"v_max_f32 v{m}, v{m}, v{s+3}"]
    return [f"v_max3_f32 v{m}, v{m}, v{s}, v{s+1}", f"v_max3_f32 v{m}, v{m}, v{s+2}, v{s+3}"]


rare_id = [0]


def check_and_rare(p, par, qbs):
    rid = rare_id[0]
    rare_id[0] += 1
    p.e(f"s_cbranch_vccnz L_rare{rid}")
    p.begin()
    p.e(f"L_rare{rid}:")
    for qb in qbs:
        for kb in range(4):
            for s in max_ops(kb, qb, kb == 0):
                p.e(s)
        m = V_X + qb
        for s in xlane("v_max_f32", m, V_TMP):
            p.e(s)
        p.e(f"v_max_f32 v{m}, 0, v{m}")
        p.e(f"v_sub_f32 v{m}, 0, v{m}")
        p.e(f"v_exp_f32 v{V_TMP}, v{m}")
        for r in range(4):
            p.e(f"v_add_f32 v{V_NEGM+4*qb+r}, v{V_NEGM+4*qb+r}, v{m}")
        p.e(f"v_mul_f32 v{V_L+qb}, v{V_L+qb}, v{V_TMP}")
        for db in range(16):
            for r in range(4):
                p.e(f"v_mul_f32 v{O(db,qb)+r}, v{O(db,qb)+r}, v{V_TMP}")
        for kb in range(4):
            for s, c in exp_ops(par, kb, qb, kb == 0, sub=m):
                p.e(s)
    p.e(f"s_branch L_ret{rid}")
    p.end_alt()
    p.e(f"L_ret{rid}:")
    for qb in qbs:
        p.e(f"v_add_f32 v{V_L+qb}, v{V_L+qb}, v{TS(qb)}")


def pack_o(ds, qb, dst=None):
    b0, b1 = O(2*ds, qb), O(2*ds+1, qb)
    d = b0 if dst is None else dst
    return [f"v_cvt_pk_bf16_f32 v{d}, v{b0}, v{b0+1}",
            f"v_cvt_pk_bf16_f32 v{d+1}, v{b0+2}, v{b0+3}",
            f"v_cvt_pk_bf16_f32 v{d+2}, v{b1}, v{b1+1}",
            f"v_cvt_pk_bf16_f32 v{d+3}, v{b1+2}, v{b1+3}"]


def q_loads(qset, s_q):
    out = []
    for qb in range(2):
        for half in range(2):
            t = S_T0 if half == 0 else S_T1
            if qb == 0:
                out.append(("salu", f"s_lshl_b32 s{t}, s{S_WAVE}, 13"))
            else:
                out.append(("salu", f"s_sub_u32 s{t}, 7, s{S_WAVE}"))
                out.append(("salu", f"s_lshl_b32 s{t}, s{t}, 13"))
            out.append(("salu", f"s_add_u32 s{t}, s{t}, s{s_q}"))
            if half:
                out.append(("salu", f"s_add_u32 s{t}, s{t}, 4096"))
            for i in range(4):
                ds = 4 * half + i
                out.append(("ld", f"buffer_load_dwordx4 {ar(A_Q[qset] + (qb*8 + ds)*4)}, v{V_L16}, {sr(S_Q)}, s{t} offen offset:{i*1024}"))
    return out


def add_dma(sc, items, lo, hi, dep=None):
    nd = sum(1 for k, t in items if k == "dma")
    k = 0
    prev = dep
    for kind, t in items:
        dl = lo + (hi - lo) * k / nd
        if kind == "dma":
            prev = sc.add(t, dl, dl - 30, DMA_COST, [(prev, 1)] if prev else [])
            k += 1
        elif kind == "m0":
            prev = sc.add(t, dl - 3, dl - 31, 1, [(prev, 0)] if prev else [])
        else:
            prev = sc.add(t, lo, hi + 8, 2 if kind == "salu2" else 1, [(prev, 0)])
    return prev


def add_exp(sc, par, kb, qb, lo, dl, state, sub=None):
    base = V_E + 4 * (ecnt[0] % 2)
    free = state.get(("e", ecnt[0] % 2), [])
    ecnt[0] += 1
    s = S(kb, qb)
    ts = TS(qb)
    pd = P(par, kb >> 1, qb) + 2 * (kb & 1)
    pre = state.get("pre")
    ex = []
    for r in range(4):
        deps = list(free) + ([pre] if pre else []) + ([ex[-1]] if ex else [])
        if sub is not None:
            a = sc.add(f"v_add_f32 v{base+r}, v{s+r}, v{sub}", lo, dl, 1, deps)
            ex.append(sc.add(f"v_exp_f32 v{base+r}, v{base+r}", lo, dl, 2, [a]))
        else:
            ex.append(sc.add(f"v_exp_f32 v{base+r}, v{s+r}", lo, dl, 2, deps))
    prev = state.get(("ts", qb))
    if prev is None:
        prev = sc.add(f"v_add_f32 v{ts}, v{base}, v{base+1}", lo, dl + 1, 1, [(ex[1], 1)] + state.get("tsfree", []))
    else:
        prev = sc.add(f"v_add_f32 v{ts}, v{ts}, v{base}", lo, dl + 1, 1, [(ex[0], 1), prev])
        prev = sc.add(f"v_add_f32 v{ts}, v{ts}, v{base+1}", lo, dl + 1, 1, [(ex[1], 1), prev])
    c0 = sc.add(f"v_cvt_pk_bf16_f32 v{pd}, v{base}, v{base+1}", lo, dl + 1, 1, [(ex[1], 1)])
    prev = sc.add(f"v_add_f32 v{ts}, v{ts}, v{base+2}", lo, dl + 2, 1, [(ex[2], 1), prev])
    prev = sc.add(f"v_add_f32 v{ts}, v{ts}, v{base+3}", lo, dl + 2, 1, [(ex[3], 1), prev])
    c1 = sc.add(f"v_cvt_pk_bf16_f32 v{pd+1}, v{base+2}, v{base+3}", lo, dl + 2, 1, [(ex[3], 1)])
    state[("ts", qb)] = prev
    state[("e", (ecnt[0] - 1) % 2)] = [prev, c0, c1]
    state["last"] = [prev, c0, c1]


def waitpoint(frs):
    return "@wait " + " ".join(ar(ring(x)) for x in frs)


def step(p, par, pv, qk, opts, qset=0, dmaK=True, dmaV=True, nxt="K", partial=False, reloadQ=False,
         publish=False, dmaVnext=False, cap=2, wo=()):
    kpar = 1 - par
    qq = [1] if qk == "D1" else [0, 1]
    pq = [1] if pv == "half" else [0, 1]
    nq = 0 if qk is None else 32 * len(qq)
    mf = []
    if qk is not None:
        mf += qk_mfmas(qset, qk in ("first", "firstD0"), qq)
    mf += pv_mfmas(par, pv == "first", pq)
    n = len(mf)
    kstep = 8 * len(qq)
    vstep = 2 * len(pq)
    sc = LSched(n, cap)
    firstsm = qk in ("first", "firstD0")
    B1 = (48 if nq == 64 else 22) if nq else None
    B2 = n - 16
    if nq:
        sc.fix("s_waitcnt lgkmcnt(0)", B1 - 1)
        sc.fix(f"s_barrier @r:V{par}", B1 - 1)
    if nxt or publish:
        tags = ([f"K{par}"] if nxt == "K" else []) + ([f"V{kpar}"] if nxt == "V" else []) + (["PST"] if publish else [])
        sc.fix("s_waitcnt lgkmcnt(0)", B2 - 1)
        sc.fix("s_barrier @r:" + ",".join(tags), B2 - 1)
    prev = None
    kr, vrd = {}, {}
    if nq:
        for nn in range(8, 32):
            lo = 0 if nn < 16 else kstep * ((nn - 16) >> 3) + (kstep - 8) + ((nn & 7) | 1)
            if nn < 16 and nq == 64:
                lo = (nn - 8) & 6
            use = kstep * (nn >> 3)
            dl = min(use - 9 - (7 - (nn & 7)) * 0.5, B1 - 10)
            prev = kr[nn] = sc.add(k_read(kpar, nn), lo, dl - 100, 1, [prev])
        if nq == 64:
            sc.fix(waitpoint(range(8, 16)), 15)
            sc.fix(waitpoint(range(16, 24)), 31)
    for m in range(32):
        if nq:
            if m < 16:
                lo = max(B1 + (m & 6), kstep * (2 + (m >> 3)) + (kstep - 8) + ((m & 7) | 1))
            else:
                lo = nq + vstep * ((m - 16) >> 1) + (vstep - 2) + 1
        else:
            if m < 8:
                continue
            lo = 0 if m < 16 else vstep * ((m - 16) >> 1) + (vstep - 2) + (m & 1)
        prev = vrd[m] = sc.add(v_read(par, m), lo, lo - 100, 1, [prev])
    if nq and vstep == 4:
        for k in range(3):
            sc.fix(waitpoint(range(8 * k, 8 * k + 8)), nq + 16 * k - 1)
    if nxt:
        for nn in range(8):
            prev = sc.add(k_read(par, nn) if nxt == "K" else v_read(kpar, nn), B2 + (nn & 6), B2 - 100, 1, [prev])
        sc.fix(waitpoint(range(0, 8)), n - 1)
    d = None
    if dmaV:
        d = add_dma(sc, dma_tile("V", kpar), 1, 40)
    if dmaK:
        d = add_dma(sc, dma_tile("K", kpar), B1 + 2, B1 + 50, d)
    if 0 in wo:
        d = add_dma(sc, dma_wo(0), B1 + 2, B1 + 50, d)
    if 1 in wo:
        d = add_dma(sc, dma_wo(1), B1 + 2, B1 + 50, d)
    if 2 in wo:
        d = add_dma(sc, dma_wo(2), 0, n - 4, d)
    if dmaVnext:
        d = add_dma(sc, dma_tile("V", par), B2 + 1, B2 + 10, d)
    pst = {}
    if partial:
        prevp = None
        for ds in range(8):
            for qb in range(2):
                dl = -50 + ds * 4
                c = sc.chain(pack_o(ds, qb), 2, dl)
                a = sc.add(f"s_mov_b32 s{S_ST}, {qb*8192 + (ds >> 2)*4096}", 0, dl, 1, [prevp])
                prevp = pst[(ds, qb)] = sc.add(
                    f"buffer_store_dwordx4 {vr(O(2*ds, qb))}, v{V_L16}, {sr(S_PART)}, s{S_ST} offen offset:{(ds & 3)*1024} sc1 @w:PST",
                    0, dl, 2, [a, c[-1]])
        a = sc.add(f"s_mov_b32 s{S_ST}, 16384", 0, 0, 1, [prevp])
        sc.add(f"buffer_store_dwordx4 {vr(V_X+8)}, v{V_L16}, {sr(S_PART)}, s{S_ST} offen sc1 @w:PST", 0, 0, 2, [a])
    if reloadQ:
        sc.chain([(t, 2 if kind == "ld" else 1) for kind, t in q_loads(0, S_QB)], nq + 2, nq, n)
    if nq:
        LAT = 5
        st = {}
        if firstsm:
            prevm = None
            for kb in range(4):
                for qi, qb in enumerate(qq):
                    g = kstep * kb + 8 * qi + 7 + LAT
                    ops = []
                    if qk == "firstD0" and qb == 0:
                        ops += mask_ops(kb, 0, V_Q0)
                    ops += max_ops(kb, qb, kb == 0)
                    prevm = sc.chain(ops, g, g, dep=prevm)[-1]
            ops = []
            for qb in qq:
                ops += [f"v_mov_b32 v{V_X+8+2*qb}, v{V_NEGM+4*qb}", f"v_mov_b32 v{V_X+9+2*qb}, v{V_L+qb}"]
            for qb in qq:
                ops += xlane("v_max_f32", V_X + qb, V_TMP)
                ops += [f"v_sub_f32 v{V_NEGM+4*qb+r}, 0, v{V_X+qb}" for r in range(4)]
            st["pre"] = sc.chain(ops, 0, 0, dep=prevm)[-1]
            for kb in range(4):
                for qb in qq:
                    add_exp(sc, kpar, kb, qb, 0, nq + 8 * kb + 4 * qb, st, sub=V_NEGM + 4 * qb)
            for qb in qq:
                sc.add(f"v_mov_b32 v{V_L+qb}, v{TS(qb)}", 0, n, 1, [st[("ts", qb)]])
        else:
            prevm = None
            cnt = 0
            tot = 4 * len(qq)
            for kb in range(4):
                for qi, qb in enumerate(qq):
                    g = kstep * kb + 8 * qi + 7 + LAT
                    dl = 12 + (n - 24) * cnt / tot
                    cnt += 1
                    if (qk == "D0" and qb == 0) or qk == "D1":
                        prevm = st["pre"] = sc.chain(mask_ops(kb, qb, V_Q0 + qb), g, dl - 1, dep=prevm)[-1]
                    add_exp(sc, kpar, kb, qb, g, dl, st)
            if len(qq) == 2:
                a = sc.add(f"v_max_f32 v{V_TMP}, v{TS(0)}, v{TS(1)}", 0, n, 1, [st[("ts", 0)], st[("ts", 1)]])
                sc.add(f"v_cmp_nge_f32 vcc, s{S_THR}, v{V_TMP}", 0, n, 1, [a])
            else:
                sc.add(f"v_cmp_nge_f32 vcc, s{S_THR}, v{TS(1)}", 0, n, 1, [st[("ts", 1)]])
    sc.emit(p, mf)
    if nq:
        assert kr[31].gap <= B1 - 4, kr[31].gap
    if nxt:
        assert vrd[31].gap <= B2 - 4, vrd[31].gap
    for (ds, qb), it in pst.items():
        assert it.gap < nq + vstep * (2 * ds) + 2 * qb, ("partial store too late", ds, qb, it.gap)
    if opts.get("verbose"):
        print(f"step par={par} pv={pv} qk={qk}: n={n} overflow={sc.overflow} wasted={sc.wasted}")
    if publish:
        publish_flag(p)
    if nq and not firstsm:
        check_and_rare(p, kpar, qq)


pub_id = [0]


def publish_flag(p):
    i = pub_id[0]
    pub_id[0] += 1
    p.e(f"s_bitcmp1_b32 s{S_MODE}, 3\ns_cbranch_scc0 L_nopub{i}")
    p.e(f"s_cmp_eq_u32 s{S_WAVE}, 0\ns_cbranch_scc0 L_nopub{i}")
    p.begin()
    p.e(f"s_mov_b64 exec, 1")
    p.e(f"v_mov_b32 v{V_TMP+1}, s{S_BITV}\nv_mov_b32 v{V_TMP+2}, s{S_BIT}")
    p.e(f"buffer_atomic_or v{V_TMP+1}, v{V_TMP+2}, {sr(S_FLAG)}, 0 offen sc1")
    p.e(f"s_mov_b64 exec, -1")
    p.end_opt("pub")
    p.e(f"L_nopub{i}:")


def start_block(p, opts):
    p.e("s_barrier @r:K0")
    if opts.get("diag"):
        stamp(p, 1)
    for nn in range(16):
        p.e(k_read(0, nn))
    mf = qk_mfmas(0, True, [0, 1])
    sc = Sched(64)
    for nn in range(16, 32):
        sc.place(k_read(0, nn), 16 * ((nn - 16) >> 3) + 8 + (nn & 7), stream="r")
    place_dma(sc, dma_tile("V", 0), 1, 4)
    sc.place("s_waitcnt lgkmcnt(0)", 47, stream="b1", force=True)
    sc.place("s_barrier @r:K1", 47, stream="b1", force=True)
    place_dma(sc, dma_tile("K", 0), 49, 1)
    for nn in range(8):
        sc.place(k_read(1, nn), 40 + nn + 8, stream="r")
    for kb in range(4):
        for qb in range(2):
            for s in max_ops(kb, qb, kb == 0):
                sc.place(s, 16 * kb + 8 * qb + 12, stream="sm")
    sc.emit(p, mf)
    p.e(f"s_bitcmp1_b32 s{S_MODE}, 0\ns_cbranch_scc0 L_noq2")
    p.begin()
    for kind, t in q_loads(1, S_QB):
        p.e(t)
    p.end_opt("q2")
    p.e("L_noq2:")
    for qb in range(2):
        for s in xlane("v_max_f32", V_X + qb, V_TMP + qb):
            p.e(s)
    for qb in range(2):
        for r in range(4):
            p.e(f"v_sub_f32 v{V_NEGM+4*qb+r}, 0, v{V_X+qb}")
    for kb in range(4):
        for qb in range(2):
            for s, c in exp_ops(0, kb, qb, kb == 0, sub=V_NEGM + 4 * qb):
                p.e(s)
    for qb in range(2):
        p.e(f"v_mov_b32 v{V_L+qb}, v{TS(qb)}")


def end_common(p, opts):
    e = p.e
    e(f"s_bitcmp1_b32 s{S_MODE}, 2\ns_cbranch_scc0 L_nocomb1")
    p.begin()
    e(f"v_mov_b32 v{V_TMP+1}, s{S_BIT}\ns_mov_b32 s{S_T1}, 0x40000")
    e("L_poll:")
    e(f"buffer_load_dword v{V_TMP}, v{V_TMP+1}, {sr(S_FLAG)}, 0 offen sc1")
    e(f"s_waitcnt vmcnt(0)\nv_readfirstlane_b32 s{S_T0}, v{V_TMP}")
    e(f"s_and_b32 s{S_T0}, s{S_T0}, s{S_BITV}\ns_cbranch_scc1 L_polled\ns_sleep 2")
    e(f"s_sub_u32 s{S_T1}, s{S_T1}, 1\ns_cmp_lg_u32 s{S_T1}, 0\ns_cbranch_scc1 L_poll\nL_polled:")
    e(f"s_mov_b32 s{S_ST}, 16384")
    e(f"buffer_load_dwordx4 {vr(V_X+8)}, v{V_L16}, {sr(S_PART)}, s{S_ST} offen sc1")
    for qb in range(2):
        for ds in range(8):
            if ds % 4 == 0:
                e(f"s_mov_b32 s{S_ST}, {qb*8192 + (ds >> 2)*4096}")
            e(f"buffer_load_dwordx4 {ar(A_Q[0] + (qb*8+ds)*4)}, v{V_L16}, {sr(S_PART)}, s{S_ST} offen offset:{(ds & 3)*1024} sc1")
    p.end_opt("comb")
    e("L_nocomb1:")
    step(p, 1, "half", None, opts, dmaK=False, dmaV=False, nxt=None, wo=(2,))
    e(f"s_bitcmp1_b32 s{S_MODE}, 2\ns_cbranch_scc1 L_comb2")


def ctx_store(e, ds, qb, src, opts):
    sc1 = " sc1" if opts.get("sc1") else ""
    if ds % 4 == 0:
        e(f"s_add_u32 s{S_ST}, s{S_CQ0+qb}, {(ds >> 2)*4096}")
    e(f"buffer_store_dwordx4 {vr(src)}, v{V_L16}, {sr(S_CTX)}, s{S_ST} offen offset:{(ds & 3)*1024}{sc1}")


def end_plain(p, opts):
    e = p.e
    for qb in range(2):
        for s in xlane("v_add_f32", V_L + qb, V_TMP + qb):
            e(s)
        e(f"v_rcp_f32 v{V_L+qb}, v{V_L+qb}")
    for qb in range(2):
        for ds in range(8):
            for t in (O(2*ds, qb), O(2*ds+1, qb)):
                for r in range(4):
                    e(f"v_mul_f32 v{t+r}, v{t+r}, v{V_L+qb}")
            for s in pack_o(ds, qb):
                e(s)
    e("s_branch L_l2_done")


def end_comb(p, opts):
    e = p.e
    e("L_comb2:")
    for qb in range(2):
        na, nb, lb = V_NEGM + 4 * qb, V_X + 8 + 2 * qb, V_X + 9 + 2 * qb
        wa, wb = V_X + 12 + 2 * qb, V_X + 13 + 2 * qb
        e(f"v_min_f32 v{V_TMP}, v{na}, v{nb}")
        e(f"v_sub_f32 v{wa}, v{V_TMP}, v{na}")
        e(f"v_sub_f32 v{wb}, v{V_TMP}, v{nb}")
        e(f"v_exp_f32 v{wa}, v{wa}\nv_exp_f32 v{wb}, v{wb}")
        e(f"v_mul_f32 v{V_L+qb}, v{V_L+qb}, v{wa}")
        e(f"v_fmac_f32 v{V_L+qb}, v{lb}, v{wb}")
        for s in xlane("v_add_f32", V_L + qb, V_TMP):
            e(s)
        e(f"v_rcp_f32 v{V_L+qb}, v{V_L+qb}")
        e(f"v_mul_f32 v{wa}, v{wa}, v{V_L+qb}\nv_mul_f32 v{wb}, v{wb}, v{V_L+qb}")
    for qb in range(2):
        wa, wb = V_X + 12 + 2 * qb, V_X + 13 + 2 * qb
        for ds in range(8):
            for k in range(4):
                e(f"v_accvgpr_read_b32 v{V_E+k}, a{A_Q[0] + (qb*8+ds)*4 + k}")
            regs = [O(2*ds, qb) + r for r in range(4)] + [O(2*ds+1, qb) + r for r in range(4)]
            for r in regs:
                e(f"v_mul_f32 v{r}, v{r}, v{wa}")
            for k in range(4):
                e(f"v_lshlrev_b32 v{V_E+4}, 16, v{V_E+k}\nv_and_b32 v{V_E+5}, 0xffff0000, v{V_E+k}")
                e(f"v_fmac_f32 v{regs[2*k]}, v{V_E+4}, v{wb}\nv_fmac_f32 v{regs[2*k+1]}, v{V_E+5}, v{wb}")
            for s in pack_o(ds, qb):
                e(s)


def setup(p, opts):
    e = p.e
    e("s_cmp_ge_u32 s2, 256\ns_cbranch_scc1 L_l2_end")
    e("s_load_dwordx4 s[80:83], s[0:1], 80")
    e("s_load_dwordx2 s[78:79], s[0:1], 64")
    if opts.get("diag"):
        e("s_memrealtime s[96:97]\ns_memtime s[98:99]")
    e(f"v_lshrrev_b32 v12, 6, v0\nv_and_b32 v0, 63, v0")
    e(f"v_readfirstlane_b32 s{S_WAVE}, v12")
    e(f"s_and_b32 s{S_H}, s2, 7\ns_lshl_b32 s{S_H}, s{S_H}, 1\ns_bfe_u32 s{S_T0}, s2, 0x10003\ns_add_u32 s{S_H}, s{S_H}, s{S_T0}")
    e(f"s_lshr_b32 s{S_G}, s2, 4\ns_lshr_b32 s{S_P}, s{S_G}, 1")
    e(f"v_lshlrev_b32 v{V_L16}, 4, v0\nv_mov_b32 v{V_KR}, v{V_L16}\nv_add_u32 v{V_VR}, {2*PITCH}, v{V_L16}")
    e(f"s_lshl_b32 s{S_T0}, s{S_WAVE}, 13\nv_add_u32 v{V_DM}, s{S_T0}, v{V_L16}")
    for k in range(8):
        e(f"s_add_u32 s{S_M0+k}, s{S_T0}, {(k >> 1)*PITCH + (k & 1)*4096}")
    e(f"s_lshl_b32 s{S_T1}, s{S_P}, 1\ns_sub_u32 s{S_T1}, 14, s{S_T1}")
    e(f"s_sub_u32 s{S_QA}, 15, s{S_P}\ns_mov_b32 s{S_QB}, s{S_P}")
    e(f"s_bitcmp1_b32 s{S_G}, 0\ns_cbranch_scc0 L_role_b")
    e(f"s_lshl_b32 s{S_KO}, s{S_T1}, 15\ns_mov_b32 s{S_WRAP}, -1\ns_mov_b32 s{S_CNT}, 7\ns_mov_b32 s{S_CNT2}, 0")
    e(f"s_cmp_lg_u32 s{S_T1}, 0\ns_cselect_b32 s{S_MODE}, 4, 0\ns_mov_b32 s{S_QB}, s{S_QA}")
    e("s_branch L_role_done\nL_role_b:")
    e(f"s_mov_b32 s{S_KO}, 0\ns_lshl_b32 s{S_WRAP}, s{S_T1}, 15\ns_sub_u32 s{S_CNT}, 6, s{S_P}\ns_sub_u32 s{S_CNT2}, s{S_P}, 1")
    e(f"s_cmp_eq_u32 s{S_P}, 0\ns_cselect_b32 s{S_MODE}, 11, 9")
    e(f"s_cmp_eq_u32 s{S_T1}, 0\ns_cselect_b32 s{S_WRAP}, -1, s{S_WRAP}\ns_cselect_b32 s{S_CNT}, 6, s{S_CNT}\n"
      f"s_cselect_b32 s{S_MODE}, 0, s{S_MODE}\ns_cselect_b32 s{S_QA}, s{S_P}, s{S_QA}")
    e("L_role_done:")
    e(f"s_mov_b32 s{S_WRAPV}, s{S_WRAP}")
    e(f"s_add_u32 s{S_KO2}, s{S_KO}, 4096\ns_mov_b32 s{S_VO}, s{S_KO}\ns_mov_b32 s{S_VO2}, s{S_KO2}")
    e(f"s_lshl_b32 s{S_T0}, s{S_QB}, 3\ns_add_u32 s{S_CQ0}, s{S_T0}, s{S_WAVE}\ns_add_u32 s{S_CQ1}, s{S_T0}, 7\ns_sub_u32 s{S_CQ1}, s{S_CQ1}, s{S_WAVE}")
    e(f"s_mul_i32 s{S_CQ0}, s{S_CQ0}, {14*16384}\ns_mul_i32 s{S_CQ1}, s{S_CQ1}, {14*16384}\ns_lshl_b32 s{S_T0}, s{S_H}, 10")
    e(f"s_add_u32 s{S_CQ0}, s{S_CQ0}, s{S_T0}\ns_add_u32 s{S_CQ1}, s{S_CQ1}, s{S_T0}")
    e(f"s_lshl_b32 s{S_QA}, s{S_QA}, 16\ns_lshl_b32 s{S_QB}, s{S_QB}, 16")
    e("s_waitcnt lgkmcnt(0)")
    e(f"s_lshl_b32 s{S_T0}, s{S_H}, 20")
    for srd, off in ((S_Q, WS_Q), (S_K, WS_K), (S_V, WS_V)):
        e(f"s_add_u32 s{srd}, s82, s{S_T0}\ns_addc_u32 s{srd+1}, s83, 0")
        if off:
            e(f"s_add_u32 s{srd}, s{srd}, {off}\ns_addc_u32 s{srd+1}, s{srd+1}, 0")
        e(f"s_mov_b32 s{srd+2}, 0x100000\ns_mov_b32 s{srd+3}, 0x20000")
    for kind, t in dma_tile("K", 0) + q_loads(0, S_QA) + dma_tile("K", 1):
        e(t)
    e(f"s_cmp_eq_u32 s{S_KO}, 0\ns_cselect_b32 s{S_WRAP}, -1, s{S_WRAP}")
    srd_from(p, S_CTX, 82, off_imm=WS_PO, size=PO_SIZE)
    e(f"s_mul_i32 s{S_T0}, s{S_H}, {256*896}")
    srd_from(p, S_WO, 78, off_sgpr=S_T0, size=4096*896)
    for k in range(8):
        e(f"s_mov_b32 s{S_SOW+k}, {32*896*k - 1024*(k & 3)}")
    e(f"s_mul_i32 s{S_MW}, s{S_WAVE}, 8224")
    e(f"s_lshl_b32 s{S_T0}, s{S_WAVE}, 1\nv_lshrrev_b32 v12, 4, v0\nv_lshlrev_b32 v12, 3, v12\nv_bfe_u32 v13, v0, 3, 1\nv_add3_u32 v12, v12, v13, s{S_T0}")
    e(f"v_mul_u32_u24 v12, 896, v12\nv_and_b32 v13, 7, v0\nv_lshl_add_u32 v{V_WD}, v13, 4, v12")
    e(f"v_bfe_u32 v12, v0, 3, 2\nv_mul_u32_u24 v12, 8224, v12\nv_lshrrev_b32 v13, 5, v0\nv_lshl_add_u32 v12, v13, 8, v12")
    e(f"v_bfe_u32 v13, v0, 2, 1\nv_lshl_add_u32 v12, v13, 7, v12\nv_and_b32 v13, 3, v0\nv_lshl_add_u32 v{V_WR0}, v13, 3, v12")
    e(f"v_add_u32 v{V_WR1}, {2*PITCH}, v{V_WR0}")
    e(f"s_lshl_b32 s{S_T0}, s{S_H}, 3\ns_add_u32 s{S_T0}, s{S_T0}, s{S_P}")
    e(f"s_lshr_b32 s{S_BIT}, s{S_T0}, 1\ns_lshl_b32 s{S_BIT}, s{S_BIT}, 2\ns_and_b32 s{S_BITV}, s{S_P}, 1\ns_lshl_b32 s{S_BITV}, 1, s{S_BITV}")
    e(f"s_lshl_b32 s{S_T0}, s{S_T0}, 17\ns_lshl_b32 s{S_T1}, s{S_WAVE}, 15\ns_add_u32 s{S_T0}, s{S_T0}, s{S_T1}")
    e(f"s_add_u32 s{S_PART}, s82, s{S_T0}\ns_addc_u32 s{S_PART+1}, s83, 0\ns_add_u32 s{S_PART}, s{S_PART}, {WS_PART}\n"
      f"s_addc_u32 s{S_PART+1}, s{S_PART+1}, 0\ns_mov_b32 s{S_PART+2}, 32768\ns_mov_b32 s{S_PART+3}, 0x20000")
    srd_from(p, S_FLAG, 80, size=256)
    e(f"s_mov_b32 s{S_THR}, {f32(opts.get('thr', 2.0**30))}")
    e(f"v_mov_b32 v{V_NEGBIG}, {f32(-1e30)}")
    e(f"v_and_b32 v12, 15, v0\nv_lshrrev_b32 v13, 4, v0\nv_lshlrev_b32 v13, 2, v13\nv_sub_u32 v12, v12, v13")
    e(f"s_lshl_b32 s{S_T0}, s{S_WAVE}, 4\nv_add_u32 v{V_Q0}, s{S_T0}, v12\ns_sub_u32 s{S_T0}, 48, s{S_T0}\nv_add_u32 v{V_Q1}, s{S_T0}, v12")
    if opts.get("diag"):
        e("v_writelane_b32 v11, s96, 0\nv_writelane_b32 v11, s98, 8")


def gen_l2(opts):
    B = {}
    def blk(name):
        B[name] = Prog()
        return B[name]
    p = blk("head")
    setup(p, opts)
    start_block(p, opts)
    if opts.get("diag"):
        stamp(p, 2)
    step(p, 0, "first", "full", opts)
    p = blk("lentry")
    p.e(f"L_lentry:\ns_cmp_eq_u32 s{S_CNT}, 0\ns_cbranch_scc1 L_lexit")
    p = blk("loop")
    p.begin()
    p.e(".p2align 4\nL_loop:")
    step(p, 1, "full", "full", opts)
    step(p, 0, "full", "full", opts)
    p.e(f"s_sub_u32 s{S_CNT}, s{S_CNT}, 1\ns_cmp_lg_u32 s{S_CNT}, 0\ns_cbranch_scc1 L_loop")
    p.end_loop(2)
    p = blk("lexit")
    p.e(f"L_lexit:\ns_bitcmp1_b32 s{S_MODE}, 0\ns_cbranch_scc1 L_trans")
    if opts.get("diag"):
        stamp(p, 3)
    p = blk("pred")
    step(p, 1, "full", "D0", opts, dmaK=False, publish=True, dmaVnext=True, wo=(0,))
    step(p, 0, "full", "D1", opts, dmaK=False, dmaV=False, nxt="V", wo=(1,))
    p = blk("endc")
    p.e("L_end:")
    if opts.get("diag"):
        stamp(p, 4)
    end_common(p, opts)
    p = blk("endp")
    end_plain(p, opts)
    p = blk("endcomb")
    end_comb(p, opts)
    p = blk("done")
    p.e("L_l2_done:")
    if opts.get("diag"):
        stamp(p, 5)
    outproj_phase(p, opts)
    if opts.get("diag"):
        stamp(p, 6)
        diag_store(p, 1, 82, S_WAVE, S_T0, S_T1)
    p.e("L_l2_end:\ns_endpgm")
    p = blk("trans")
    p.e(f"L_trans:\ns_mov_b32 s{S_WRAP}, -1\ns_mov_b32 s{S_WRAPV}, -1\n@wait a[64:127]\ns_bitcmp1_b32 s{S_MODE}, 1\ns_cbranch_scc1 L_trans0")
    p = blk("t12")
    step(p, 1, "full", "first", opts, qset=1, reloadQ=True, cap=3)
    step(p, 0, "first", "full", opts, qset=1, partial=True, cap=3)
    p.e(f"@wait a[0:63]\ns_andn2_b32 s{S_MODE}, s{S_MODE}, 1\ns_mov_b32 s{S_CNT}, s{S_CNT2}\ns_branch L_lentry")
    p = blk("t12z")
    p.e("L_trans0:")
    step(p, 1, "full", "firstD0", opts, qset=1, dmaK=False, dmaVnext=True, cap=3, wo=(0,))
    step(p, 0, "first", "D1", opts, qset=1, dmaK=False, dmaV=False, nxt="V", partial=True, publish=True, cap=4, wo=(1,))
    p.e("s_branch L_end")
    tailp = ["pred", "endc", "endp", "done"]
    tailc = ["pred", "endc", "endcomb", "done"]
    paths = [
        (["head", "lentry", "loop", "lexit"] + tailc, {"comb"}),
        (["head", "lentry", "loop", "lexit"] + tailp, set()),
    ]
    for pub in (set(), {"pub"}):
        o = {"q2"} | pub
        paths += [
            (["head", "lentry", "loop", "lexit", "trans", "t12", "lentry", "loop", "lexit"] + tailp, o),
            (["head", "lentry", "lexit", "trans", "t12", "lentry", "loop", "lexit"] + tailp, o),
            (["head", "lentry", "loop", "lexit", "trans", "t12", "lentry", "lexit"] + tailp, o),
            (["head", "lentry", "loop", "lexit", "trans", "t12z", "endc", "endp", "done"], o),
        ]
    layout = ["head", "lentry", "loop", "lexit", "pred", "endc", "endp", "endcomb", "done", "trans", "t12", "t12z"]
    return finalize_multi(B, paths, layout)


if __name__ == "__main__":
    import gen_l1
    opts = {"diag": True, "verbose": True}
    out = ""
    for name in ("l1_kernel", "l2_kernel"):
        out += f"; @launch kernel={name} grid=(256,1,1) block=(256,1,1) lds={LDS_MAX}\n"
    out += '.amdgcn_target "amdgcn-amd-amdhsa--gfx950"\n.text\n'
    out += kernel_text("l1_kernel", gen_l1.gen_l1(opts)) + kernel_text("l2_kernel", gen_l2(opts))
    out += '.section .rodata,"a"\n' + descriptor("l1_kernel") + "\n" + descriptor("l2_kernel") + "\n"
    open("l12.s", "w").write(out)
```

```python
from common import *
from gen_a import gen_trig_frag, PERMOFF

S_CTX, S_WO, S_OUT, S_U = 4, 8, 12, 16
W, T0, T1, RT, CT, XI = 40, 41, 42, 43, 44, 45
S_SOW = 48
S_SOC = 52
S_M0 = 56
OSLOT = 4 * 1056
NSL = 8
DEPTH = 6


def sel_frags(e, dst, tmp):
    for ee in range(2):
        t, gt, jt, val = tmp, tmp + 1, tmp + 2, tmp + 3
        e(f"v_bfe_u32 v{t}, v0, 2, 2\nv_lshlrev_b32 v{t}, 3, v{t}\nv_and_b32 v{gt}, 3, v0\nv_add3_u32 v{t}, v{t}, v{gt}, {4*ee}")
        e(f"v_bfe_u32 v{gt}, v{t}, 2, 2\nv_lshrrev_b32 v{jt}, 4, v0\nv_cmp_eq_u32 s[60:61], v{gt}, v{jt}")
        e(f"v_bfe_u32 v{jt}, v{t}, 1, 1\nv_lshrrev_b32 v{gt}, 4, v{t}\nv_lshl_add_u32 v{jt}, v{gt}, 1, v{jt}")
        e(f"v_and_b32 v{val}, 1, v{t}\nv_lshlrev_b32 v{val}, 4, v{val}\nv_lshlrev_b32 v{val}, v{val}, v{tmp+4}")
        e(f"v_cndmask_b32 v{val}, 0, v{val}, s[60:61]")
        for j in range(4):
            e(f"v_cmp_eq_u32 vcc, {j}, v{jt}\nv_cndmask_b32 v{dst + 4*ee + j}, 0, v{val}, vcc")


def reduce_po(p, opts):
    e = p.e
    vL16, vO = 1, 2
    e(f"s_and_b32 s{T0}, s2, 7\ns_mul_i32 s{T0}, s{T0}, 28\ns_add_u32 s{T0}, s{T0}, s{XI}")
    e(f"s_lshl_b32 s{T0}, s{T0}, 3\ns_lshl_b32 s{T1}, s{W}, 1\ns_add_u32 s{RT}, s{T0}, s{T1}")
    e(f"s_lshl_b32 s{T0}, s{RT}, 14")
    srd_from(p, S_CTX, 82, off_sgpr=T0, off_imm=WS_PO, size=PO_SIZE)
    e(f"v_lshlrev_b32 v{vL16}, 4, v0")
    for k in range(8):
        e(f"s_mov_b32 s{48+k}, {k*4096}")
    for n in range(32):
        e(f"buffer_load_dwordx4 {ar(4*n)}, v{vL16}, {sr(S_CTX)}, s{48 + (n >> 2)} offen offset:{(n & 3)*1024}" + (" sc1" if opts.get("po_sc1ld") else ""))
    e("v_mov_b32 v16, 0x3f80")
    sel_frags(e, 20, 12)
    e(f"s_mul_i32 s{T0}, s{RT}, 4682\ns_lshr_b32 s{T0}, s{T0}, 16\ns_mul_i32 s{T1}, s{T0}, 14\ns_sub_u32 s{T1}, s{RT}, s{T1}")
    e(f"s_mul_i32 s{T0}, s{T0}, {16*1792}\ns_lshl_b32 s{T1}, s{T1}, 6\ns_add_u32 s{T0}, s{T0}, s{T1}\ns_add_u32 s{T0}, s{T0}, 896")
    e(f"v_and_b32 v12, 15, v0\nv_mul_u32_u24 v12, 1792, v12\nv_lshrrev_b32 v13, 4, v0\nv_lshlrev_b32 v13, 4, v13\nv_add3_u32 v{vO}, v12, v13, s{T0}")
    srd_from(p, S_OUT, 80, size=2048*1792)
    for k in range(2):
        for h in range(16):
            for ee in range(2):
                d = vr(32 + 8 * k + 4 * ee)
                e(mfma16(d, vr(20 + 4 * ee), ar(4 * (16 * k + h)), d if h else "0"))
    for k in range(2):
        b0, b1 = 32 + 8 * k, 36 + 8 * k
        e(f"v_cvt_pk_bf16_f32 v{b0}, v{b0}, v{b0+1}\nv_cvt_pk_bf16_f32 v{b0+1}, v{b0+2}, v{b0+3}")
        e(f"v_cvt_pk_bf16_f32 v{b0+2}, v{b1}, v{b1+1}\nv_cvt_pk_bf16_f32 v{b0+3}, v{b1+2}, v{b1+3}")
        e(f"buffer_store_dwordx4 {vr(b0)}, v{vO}, {sr(S_OUT)}, 0 offen offset:{k*64}")


def a3(p, opts):
    e = p.e
    PG, DG = RT, CT
    USLOT = 8448
    UB = 57344
    vDU, vRU, vL16, vO = 1, 2, 3, 4
    ACC = 128
    A_G, A_U = 0, 32
    e(f"s_sub_u32 s{T0}, s{XI}, 28\ns_lshl_b32 s{T0}, s{T0}, 3\ns_and_b32 s{T1}, s2, 7\ns_add_u32 s{T0}, s{T0}, s{T1}")
    e(f"s_cmp_ge_u32 s{T0}, 28\ns_cbranch_scc1 L_l3_end")
    e(f"s_mul_i32 s{PG}, s{T0}, 9363\ns_lshr_b32 s{PG}, s{PG}, 16\ns_mul_i32 s{T1}, s{PG}, 7\ns_sub_u32 s{DG}, s{T0}, s{T1}")
    e(f"s_lshl_b32 s{T0}, s{PG}, 10\ns_lshl_b32 s{T1}, s{W}, 8\ns_add_u32 s{T0}, s{T0}, s{T1}")
    srd_from(p, S_U, 82, off_sgpr=T0, off_imm=WS_U, size=448*4096)
    for k in range(8):
        e(f"s_mov_b32 s{48+k}, {4096*k - 1056*(k & 3)}")
    e(f"s_mul_i32 s{S_M0}, s{W}, {3*USLOT}\ns_add_u32 s{S_M0}, s{S_M0}, {UB}")
    e(f"v_lshrrev_b32 v12, 4, v0\nv_lshlrev_b32 v12, 15, v12\nv_and_b32 v13, 15, v0\nv_lshl_add_u32 v{vDU}, v13, 4, v12")

    def loads(s):
        sl = s % 3
        out = []
        for k in range(8):
            if k % 4 == 0:
                out.append(("m0", f"s_add_u32 m0, s{S_M0}, {sl*USLOT + (k >> 2)*4224}"))
            out.append(("dma", f"buffer_load_dwordx4 v{vDU}, {sr(S_U)}, s{48+k} offen offset:{(k & 3)*1056} lds @w:S{sl}"))
        out.append(("s2", f"s_add_u32 s{S_U}, s{S_U}, {32*4096}\ns_addc_u32 s{S_U+1}, s{S_U+1}, 0"))
        out.append(("s", f"s_sub_u32 s{S_U+2}, s{S_U+2}, {32*4096}"))
        return out
    for s in range(3):
        for k, t in loads(s):
            e(t)
    e(f"v_lshlrev_b32 v{vL16}, 4, v0")
    e(f"s_lshl_b32 s{T0}, s{DG}, 6\ns_lshr_b32 s{T1}, s{W}, 1\ns_lshl_b32 s{T1}, s{T1}, 5\ns_add_u32 s{T0}, s{T0}, s{T1}")
    e(f"s_and_b32 s{T1}, s{W}, 1\ns_lshl_b32 s{T1}, s{T1}, 2\ns_add_u32 s{T0}, s{T0}, s{T1}")
    e(f"v_bfe_u32 v12, v0, 2, 2\nv_lshlrev_b32 v12, 3, v12\nv_and_b32 v13, 3, v0\nv_add3_u32 v12, v12, v13, s{T0}")
    e(f"v_cvt_f32_u32 v5, v12\nv_mul_f32 v5, {f32(1/448)}, v5")
    e(f"v_lshrrev_b32 v6, 4, v0\nv_lshlrev_b32 v6, 2, v6\nv_cvt_f32_u32 v6, v6\nv_mul_f32 v6, v6, v5\nv_add_f32 v7, {f32(0.25)}, v6")
    e(f"s_lshl_b32 s{T0}, s{W}, 10\nv_add_u32 v8, s{T0}, v{vL16}")
    e(f"v_mul_f32 v9, {f32(224.0)}, v5\nv_cos_f32 v9, v9\nv_cmp_gt_u32 s[60:61], 16, v0")
    for ks in range(14):
        dst = 20 + 4 * (ks % 2)
        if ks <= 6:
            gen_trig_frag(e, dst, 5, 6, [32 * ks + o for o in PERMOFF], 16)
        else:
            gen_trig_frag(e, dst, 5, 7, [32 * ks - 224 + o for o in PERMOFF], 16)
        if ks == 7:
            e(f"v_fmamk_f32 v16, v5, {f32(1.0)}, v7\nv_cos_f32 v16, v16\nv_cos_f32 v17, v7\ns_nop 0\nv_cndmask_b32 v17, v17, v9, s[60:61]")
            e(f"v_cvt_pk_bf16_f32 v{dst}, v17, v16")
        e(f"ds_write_b128 v8, {vr(dst)} offset:{ks*4096}")
    e(f"v_bfe_u32 v12, v0, 2, 3\nv_mul_u32_u24 v12, 1056, v12")
    e(f"v_lshrrev_b32 v13, 5, v0\nv_lshl_add_u32 v12, v13, 8, v12")
    e(f"v_and_b32 v13, 3, v0\nv_lshl_add_u32 v12, v13, 3, v12\nv_add_u32 v{vRU}, s{S_M0}, v12")
    e(f"s_lshl_b32 s{T0}, s{W}, 2\nv_and_b32 v12, 3, v0\nv_bfe_u32 v13, v0, 2, 1\nv_lshlrev_b32 v13, 4, v13\nv_add3_u32 v12, v12, v13, s{T0}")
    e(f"s_lshl_b32 s{T0}, s{PG}, 4\nv_lshlrev_b32 v12, 6, v12\nv_bfe_u32 v13, v0, 3, 1\nv_add3_u32 v12, v12, v13, s{T0}")
    e(f"s_lshl_b32 s{T0}, s{DG}, 7\nv_mul_u32_u24 v12, 1792, v12\nv_lshrrev_b32 v13, 4, v0\nv_lshlrev_b32 v13, 4, v13\nv_add3_u32 v{vO}, v12, v13, s{T0}")
    srd_from(p, S_OUT, 80, size=2048*1792)
    e("s_waitcnt lgkmcnt(0)\ns_barrier")

    def rds(s):
        sl = s % 3
        out = [f"ds_read_b128 {ar(A_G + 16*(s % 2) + 4*mb)}, v{vL16} offset:{s*4096 + mb*1024}" for mb in range(4)]
        out += [f"ds_read_b64_tr_b16 {ar(A_U + 32*(s % 2) + 4*nb + 2*hf, 2)}, v{vRU} offset:{sl*USLOT + hf*512 + nb*32} @r:S{sl}"
                for nb in range(8) for hf in range(2)]
        return out
    for t in rds(0):
        e(t)
    for s in range(14):
        mf = []
        for nb in range(8):
            for mb in range(4):
                d = vr(ACC + (nb * 4 + mb) * 4)
                mf.append(mfma16(d, ar(A_G + 16 * (s % 2) + 4 * mb), ar(A_U + 32 * (s % 2) + 4 * nb), d if s else "0"))
        sc = LSched(32)
        if s + 3 < 14:
            sc.fix(f"@wait {ar(A_U + 32*(s % 2), 32)}", 0)
            prev = None
            for k, t in loads(s + 3):
                prev = sc.add(t, 1, 0, 2 if k in ("dma", "s2") else 1, [(prev, 1 if k == "dma" else 0)] if prev else [])
        if s + 1 < 14:
            sc.chain(rds(s + 1), 12, 12)
        sc.emit(p, mf)
    for nb in range(8):
        e(f"s_mov_b32 s{T0}, {2*nb*1792}")
        for j in range(2):
            b0 = ACC + (nb * 4 + 2 * j) * 4
            b1 = b0 + 4
            e(f"v_cvt_pk_bf16_f32 v{b0}, v{b0}, v{b0+1}\nv_cvt_pk_bf16_f32 v{b0+1}, v{b0+2}, v{b0+3}")
            e(f"v_cvt_pk_bf16_f32 v{b0+2}, v{b1}, v{b1+1}\nv_cvt_pk_bf16_f32 v{b0+3}, v{b1+2}, v{b1+3}")
            e(f"buffer_store_dwordx4 {vr(b0)}, v{vO}, {sr(S_OUT)}, s{T0} offen offset:{j*64}")


def gen_l3(opts):
    B = {}
    p = B["head"] = Prog()
    e = p.e
    e("s_cmp_ge_u32 s2, 256\ns_cbranch_scc1 L_l3_end")
    e("s_load_dwordx2 s[78:79], s[0:1], 64\ns_load_dwordx2 s[80:81], s[0:1], 72\ns_load_dwordx2 s[82:83], s[0:1], 88")
    if opts.get("diag"):
        e("s_memrealtime s[92:93]\ns_memtime s[94:95]")
    e(f"v_lshrrev_b32 v12, 6, v0\nv_and_b32 v0, 63, v0\nv_readfirstlane_b32 s{W}, v12\ns_lshr_b32 s{XI}, s2, 3")
    e("s_waitcnt lgkmcnt(0)")
    if opts.get("diag"):
        e("v_writelane_b32 v11, s92, 0\nv_writelane_b32 v11, s94, 8")
    e(f"s_cmp_ge_u32 s{XI}, 28\ns_cbranch_scc1 L_a3")
    p = B["op"] = Prog()
    reduce_po(p, opts)
    p.e("s_branch L_l3_done")
    p = B["a3"] = Prog()
    p.e("L_a3:")
    a3(p, opts)
    p = B["done"] = Prog()
    p.e("L_l3_done:")
    if opts.get("diag"):
        diag_store(p, 2, 82, W, T0, T1)
    p.e("L_l3_end:\ns_endpgm")
    return finalize_multi(B, [(["head", "op", "done"], ()), (["head", "a3", "done"], ())], ["head", "op", "a3", "done"])
```

```python
import sys
def kernel(name, body, iters, nwaves, lds, nvgpr=512, setup=""):
    s = []
    a = s.append
    a(f".p2align 8\n.type {name},@function\n{name}:")
    a("s_cmp_ge_u32 s2, 256\ns_cbranch_scc1 L_end_%s" % name)
    a("s_load_dwordx2 s[4:5], s[0:1], 0")
    a("s_load_dwordx2 s[6:7], s[0:1], 88")
    a("s_waitcnt lgkmcnt(0)")
    a("s_mov_b32 s8, s4\ns_mov_b32 s9, s5\ns_mov_b32 s10, 0x4000000\ns_mov_b32 s11, 0x20000")
    a("s_mov_b32 s12, s6\ns_mov_b32 s13, s7\ns_mov_b32 s14, 0x1000000\ns_mov_b32 s15, 0x20000")
    a("v_lshlrev_b32 v1, 4, v0")
    a("s_lshl_b32 s16, s2, 16")
    for i in range(16):
        a(f"buffer_load_dwordx4 v[{16+4*i}:{19+4*i}], v1, s[8:11], s16 offen")
        a("s_add_u32 s16, s16, 0x2000")
    a("s_waitcnt vmcnt(0)")
    a("v_and_b32 v2, 63, v0\nv_lshlrev_b32 v2, 4, v2")
    a("v_lshrrev_b32 v3, 6, v0\nv_lshlrev_b32 v3, 12, v3\nv_add_u32 v3, v3, v2")
    if lds:
        for i in range(4):
            a(f"ds_write_b128 v3, v[{16+4*i}:{19+4*i}] offset:{i*1024}")
        a("s_waitcnt lgkmcnt(0)")
    for i in range(128):
        a(f"v_accvgpr_write_b32 a{i}, 0")
    a(setup)
    a("s_barrier")
    a("s_memtime s[20:21]\ns_memrealtime s[22:23]\ns_waitcnt lgkmcnt(0)")
    a(f"s_mov_b32 s17, {iters}")
    a("s_mov_b32 s18, 0")
    a(f".p2align 6\nL_loop_{name}:")
    a(body)
    a(f"s_sub_u32 s17, s17, 1\ns_cmp_lg_u32 s17, 0\ns_cbranch_scc1 L_loop_{name}")
    a("s_waitcnt vmcnt(0) lgkmcnt(0)")
    a("s_memtime s[24:25]\ns_memrealtime s[26:27]\ns_waitcnt lgkmcnt(0)")
    a("s_sub_u32 s28, s24, s20\ns_sub_u32 s29, s26, s22")
    a("v_mov_b32 v4, s28\nv_mov_b32 v5, s29\nv_mov_b32 v6, s22\nv_mov_b32 v7, s26")
    a("v_lshrrev_b32 v8, 6, v0\nv_lshlrev_b32 v8, 4, v8")
    a("s_lshl_b32 s16, s2, 8")
    a("s_nop 4")
    a("buffer_store_dwordx4 v[4:7], v8, s[12:15], s16 offen")
    a("s_waitcnt vmcnt(0)")
    a(f"L_end_{name}:\ns_endpgm")
    desc = f""".amdhsa_kernel {name}
  .amdhsa_next_free_vgpr {nvgpr}
  .amdhsa_next_free_sgpr 102
  .amdhsa_accum_offset {min(256, nvgpr-128)}
  .amdhsa_group_segment_fixed_size 0
  .amdhsa_kernarg_size 96
  .amdhsa_user_sgpr_count 2
  .amdhsa_user_sgpr_kernarg_segment_ptr 1
  .amdhsa_system_sgpr_workgroup_id_x 1
.end_amdhsa_kernel"""
    launch = f"; @launch kernel={name} grid=(256,1,1) block=({64*nwaves},1,1) lds={lds}"
    return launch, "\n".join(s), desc

def m32(i, acc):
    A = 16 + 4*(i % 8); B = 48 + 4*((i*3+1) % 8)
    return f"v_mfma_f32_32x32x16_bf16 a[{acc*16}:{acc*16+15}], v[{A}:{A+3}], v[{B}:{B+3}], a[{acc*16}:{acc*16+15}]"
def m16(i, acc):
    A = 16 + 4*(i % 8); B = 48 + 4*((i*3+1) % 8)
    return f"v_mfma_f32_16x16x32_bf16 a[{acc*4}:{acc*4+3}], v[{A}:{A+3}], v[{B}:{B+3}], a[{acc*4}:{acc*4+3}]"

def build(kernels, path):
    L = [k[0] for k in kernels]
    out = "\n".join(L) + "\n.amdgcn_target \"amdgcn-amd-amdhsa--gfx950\"\n.text\n"
    out += "\n".join(k[1] for k in kernels)
    out += "\n.section .rodata,\"a\"\n" + "\n".join(".p2align 6\n" + k[2] for k in kernels) + "\n"
    open(path, "w").write(out)

if __name__ == "__main__":
    ks = []
    N = 64
    def body32(fill, n=16):
        r = []
        for i in range(n):
            r.append(m32(i, i % 8))
            r.append(fill(i))
        return "\n".join(x for x in r if x)
    ks.append(kernel("a_m32_kernel", body32(lambda i: ""), 100, 4, 0))
    ks.append(kernel("b_m16_kernel", "\n".join(m16(i, i % 32) for i in range(32)), 100, 4, 0))
    def dsr(i, k=1):
        return "\n".join(f"ds_read_b128 v[{80+4*((i*k+j)%8)}:{83+4*((i*k+j)%8)}], v3 offset:{((i*k+j)%4)*1024}" for j in range(k))
    ks.append(kernel("c_m32_ds1_kernel", body32(lambda i: dsr(i)), 100, 4, 65536))
    setup = "v_lshrrev_b32 v9, 6, v0\ns_nop 1\nv_readfirstlane_b32 s30, v9\ns_nop 4\ns_lshl_b32 s30, s30, 12\ns_add_u32 s30, s30, 0x8000\ns_mov_b32 m0, s30\ns_lshl_b32 s31, s2, 16\ns_and_b32 s31, s31, 0x70000"
    def dma(i, every):
        if i % every == 0:
            return f"buffer_load_dwordx4 v1, s[8:11], s31 offen offset:{(i//every % 4)*1024} lds" + ("\ns_waitcnt vmcnt(8)" if i == 0 else "")
        return ""
    ks.append(kernel("d_m32_dma4_kernel", body32(lambda i: dma(i, 4)), 100, 4, 65536, setup=setup))
    ks.append(kernel("e_m32_dma4_ds1_kernel", body32(lambda i: dsr(i) + "\n" + dma(i, 4)), 100, 4, 65536, setup=setup))
    def valu(i, n):
        return "\n".join(f"v_fma_f32 v{112+(i*n+j)%16}, v{16+j}, v{17+j}, v{112+(i*n+j)%16}" for j in range(n))
    ks.append(kernel("f_m32_dma4_ds1_v2_kernel", body32(lambda i: dsr(i) + "\n" + dma(i, 4) + "\n" + valu(i, 2)), 100, 4, 65536, setup=setup))
    ks.append(kernel("g_m32_dma4_ds1_v3_kernel", body32(lambda i: dsr(i) + "\n" + dma(i, 4) + "\n" + valu(i, 3)), 100, 4, 65536, setup=setup))
    ks.append(kernel("h_m32_ds1_v3_kernel", body32(lambda i: dsr(i) + "\n" + valu(i, 3)), 100, 4, 65536, setup=setup))
    ks.append(kernel("i_m32_dma2_ds1_kernel", body32(lambda i: dsr(i) + "\n" + dma(i, 2)), 100, 4, 65536, setup=setup))
    ks.append(kernel("j_8w_m32_kernel", body32(lambda i: ""), 50, 8, 0, nvgpr=256))
    ks.append(kernel("k_8w_m32_dma4_ds1_v3_kernel", body32(lambda i: dsr(i) + "\n" + dma(i, 4) + "\n" + valu(i, 3)), 50, 8, 65536, nvgpr=256, setup=setup))
    ks.append(kernel("l_8w_m32_dma8_ds1_v3_kernel", body32(lambda i: dsr(i) + "\n" + dma(i, 8) + "\n" + valu(i, 3)), 50, 8, 65536, nvgpr=256, setup=setup))
    build(ks, "mb1.s")
```

```python
from mb1_gen import *
J = "\n".join
ks = []
for op in ("v_cos_f32", "v_sin_f32", "v_exp_f32", "v_rcp_f32"):
    ks.append(kernel(f"{op}_kernel", J(f"{op} v{112+i%8}, v{16+i%8}" for i in range(128)), 25, 4, 0))
ks.append(kernel("fmamk_kernel", J(f"v_fmamk_f32 v{112+i%8}, v{16+i%8}, 0x42c80000, v17" for i in range(128)), 25, 4, 0))
ks.append(kernel("mix_kernel", J(f"v_fmamk_f32 v{112+i%8}, v{16+i%8}, 0x42c80000, v17\nv_cos_f32 v{120+i%8}, v{16+i%8}" for i in range(128)), 25, 4, 0))
ks.append(kernel("dep_kernel", J(f"v_fmamk_f32 v{112+i%8}, v{16+i%8}, 0x42c80000, v17\nv_cos_f32 v{112+i%8}, v{112+i%8}" for i in range(128)), 25, 4, 0))
ks.append(kernel("pkmul_kernel", J(f"v_pk_mul_f32 v[{112+2*(i%4)}:{113+2*(i%4)}], v[16:17], v[18:19]" for i in range(128)), 25, 4, 0))
ks.append(kernel("pkfma_kernel", J(f"v_pk_fma_f32 v[{112+2*(i%4)}:{113+2*(i%4)}], v[16:17], v[18:19], v[20:21]" for i in range(128)), 25, 4, 0))
ks.append(kernel("fma_kernel", J(f"v_fma_f32 v{112+i%8}, v16, v18, v20" for i in range(128)), 25, 4, 0))
ks.append(kernel("cvt_kernel", J(f"v_cvt_pk_bf16_f32 v{112+i%8}, v16, v18" for i in range(128)), 25, 4, 0))
ks.append(kernel("accw_kernel", J(f"v_accvgpr_write_b32 a{200+i%8}, v16" for i in range(128)), 25, 4, 0))
build(ks, "mb11.s")
```

```python
from mb1_gen import *
J = "\n".join
ks = []
hdr = "s_mov_b32 s14, 0x8000000\nv_and_b32 v10, 63, v0\nv_lshlrev_b32 v10, 4, v10\nv_lshrrev_b32 v9, 6, v0\ns_nop 1\nv_readfirstlane_b32 s30, v9\ns_nop 4\n"
for nm, mods in (("sc1", "sc1"), ("plain", ""), ("nt", "nt")):
    setup = hdr + "s_lshl_b32 s31, s2, 17\ns_lshl_b32 s30, s30, 15\ns_add_u32 s31, s31, s30\ns_add_u32 s31, s31, 0x1000000"
    body = J(f"s_add_u32 s33, s31, {i*1024}\nbuffer_store_dwordx4 v[{16+4*(i%8)}:{19+4*(i%8)}], v10, s[12:15], s33 offen {mods}" for i in range(32))
    ks.append(kernel(f"w_{nm}_kernel", body, 1, 4, 0, setup=setup))
setup = hdr + "s_lshl_b32 s34, s30, 12\ns_add_u32 s34, s34, 0x8000\ns_mov_b32 m0, s34\ns_lshl_b32 s31, s2, 21\ns_add_u32 s31, s31, 0x1000000\n"
body = J(f"buffer_load_dwordx4 v1, s[12:15], s31 offen sc1 lds\ns_add_u32 s31, s31, 0x1000" + ("\ns_waitcnt vmcnt(24)" if i % 4 == 3 else "") for i in range(16))
k = kernel("r_kernel", body, 32, 4, 65536, setup=setup)
ks.append((k[0].replace("grid=(256", "grid=(8"), k[1], k[2]))
build(ks, "mb13.s")
```
